```python
import torch

def _softmax(x, axis=-1):
    return torch.softmax(x, dim=axis)
def _gelu(x):
    return torch.nn.functional.gelu(x, approximate="tanh")
def _silu(x):
    return torch.nn.functional.silu(x)
def _sigmoid(x):
    return torch.sigmoid(x)
def _layernorm(x, axis=-1, eps=1e-5):
    m = x.mean(dim=axis, keepdim=True)
    v = x.var(dim=axis, keepdim=True, unbiased=False)
    return (x - m) / torch.sqrt(v + eps)
def _scatter_add(tgt, idx, src, axis=0):
    return tgt.clone().index_add_(axis, idx, src)
def _segment_sum(src, seg, n):
    out = torch.zeros((n,) + src.shape[1:], dtype=src.dtype)
    return out.index_add_(0, seg, src)
def _pad(x, pw):
    flat = tuple(v for pair in reversed(pw) for v in pair)
    return torch.nn.functional.pad(x, flat)

kernel_name = 'recurrent_scan__sliding_block__glu_gated_bilinear__prompt'

def setup_inputs():

    _w = (lambda a: (lambda t: t.to(torch.bfloat16) if t.is_floating_point() else t)(torch.as_tensor(a)))
    def _A_setup():
        B, S, D = 1, 2048, 512
        return {
            "x": _w((lambda *s: torch.randn(*s, dtype=torch.bfloat16) * 0.05)(B, S, D)),
            "wqkv": _w((lambda *s: torch.randn(*s, dtype=torch.bfloat16) * 0.2)(D, 3 * D)),
            "wo": _w((lambda *s: torch.randn(*s, dtype=torch.bfloat16) * 0.2)(D, D)),
        }
    _A_in = _A_setup()

    def _B_setup():
        B, S, D, F = 1, 2048, 512, 1792
        return {
            "x": _w((lambda *s: torch.randn(*s, dtype=torch.bfloat16) * 0.05)(B, S, D)),
            "w_gate": _w((lambda *s: torch.randn(*s, dtype=torch.bfloat16) * 0.1)(D, F) * (D ** -0.5)),
            "w_up": _w((lambda *s: torch.randn(*s, dtype=torch.bfloat16) * 0.1)(D, F) * (D ** -0.5)),
            "w_down": _w((lambda *s: torch.randn(*s, dtype=torch.bfloat16) * 0.1)(F, D) * (F ** -0.5)),
        }
    _B_in = _B_setup()

    return {
        "A_x": _A_in["x"],
        "A_wqkv": _A_in["wqkv"],
        "A_wo": _A_in["wo"],
        "B_x": _B_in["x"],
        "B_w_gate": _B_in["w_gate"],
        "B_w_up": _B_in["w_up"],
        "B_w_down": _B_in["w_down"],
    }

def reference(A_x, A_wqkv, A_wo, B_x, B_w_gate, B_w_up, B_w_down):
    def _A_ref(x, wqkv, wo):
        B, S, D = x.shape
        H = 32; Dh = D // H; W = 256
        qkv = (lambda x, *d: x.permute(*d))((x @ wqkv).reshape(B, S, 3, H, Dh), 2, 0, 3, 1, 4)
        q, k, v = qkv[0], qkv[1], qkv[2]
        scores = torch.einsum("bhqd,bhkd->bhqk", q, k) * (Dh ** -0.5)
        idx = torch.arange(S)
        mask = (idx[:, None] - idx[None, :] >= 0) & (idx[:, None] - idx[None, :] < W)
        scores = torch.where(mask[None, None], scores, -1e9)
        p = _softmax(scores, axis=-1)
        o = torch.einsum("bhqk,bhkd->bhqd", p, v)
        return (lambda x, *d: x.permute(*d))(o, 0, 2, 1, 3).reshape(B, S, D) @ wo

    def _B_ref(x, w_gate, w_up, w_down):
        g = torch.einsum("bsd,df->bsf", x, w_gate)
        u = torch.einsum("bsd,df->bsf", x, w_up)
        h = g * u
        return torch.einsum("bsf,fd->bsd", h, w_down)

    x = A_x
    xn = _layernorm(x, axis=-1)
    s = _A_ref(xn, A_wqkv, A_wo)
    g = _silu(_B_ref(xn, B_w_gate, B_w_up, B_w_down))
    return x + s * g
```

```python
import re, sys

TRANS = ("v_exp_f32", "v_log_f32", "v_rcp_f32", "v_rsq_f32", "v_sqrt_f32", "v_sin_f32", "v_cos_f32", "v_rcp_iflag_f32")

def regs_of(tok):
    tok = tok.strip()
    neg = tok.lstrip("-")
    if neg.startswith("abs(") or neg.startswith("|"):
        neg = neg.replace("abs(", "").replace(")", "").replace("|", "")
    tok = neg
    m = re.fullmatch(r"([vas])\[(\d+):(\d+)\]", tok)
    if m:
        return [(m.group(1), i) for i in range(int(m.group(2)), int(m.group(3)) + 1)]
    m = re.fullmatch(r"([vas])(\d+)", tok)
    if m:
        return [(m.group(1), int(m.group(2)))]
    if tok == "vcc": return [("s", "vcc_lo"), ("s", "vcc_hi")]
    if tok in ("vcc_lo", "vcc_hi"): return [("s", tok)]
    if tok == "exec": return [("s", "exec_lo"), ("s", "exec_hi")]
    if tok in ("exec_lo", "exec_hi"): return [("s", tok)]
    if tok == "m0": return [("s", "m0")]
    return []

class Ins:
    __slots__ = ("text", "op", "ops", "mods", "w", "r", "kind", "label", "target", "passes", "srcC", "srcAB", "comment")
    def __init__(self, text):
        self.text = text
        self.label = None; self.target = None; self.passes = 0; self.srcC = []; self.srcAB = []
        t = text.split(";")[0].strip()
        self.w = []; self.r = []
        if t.endswith(":"):
            self.label = t[:-1]; self.kind = "label"; self.op = ""; return
        if t.startswith(".") or t == "":
            self.kind = "dir"; self.op = ""; return
        parts = t.split(None, 1)
        op = parts[0]; self.op = op
        rest = parts[1] if len(parts) > 1 else ""
        ops = []; cur = ""; depth = 0
        for ch in rest:
            if ch in "[(": depth += 1
            if ch in "])": depth -= 1
            if ch == "," and depth == 0:
                ops.append(cur.strip()); cur = ""
            else:
                cur += ch
        if cur.strip(): ops.append(cur.strip())
        mods = ""
        if ops:
            sp = ops[-1].split(None, 1)
            if len(sp) > 1 and not ops[-1].startswith("hwreg"):
                ops[-1] = sp[0]; mods = sp[1]
        self.ops = ops; self.mods = mods
        R = lambda i: regs_of(ops[i]) if i < len(ops) else []
        base = re.sub(r"_(e32|e64|dpp|sdwa)$", "", op)
        if op.startswith("v_mfma") or op.startswith("v_smfmac"):
            self.kind = "mfma"
            self.passes = 8 if "32x32" in op else 4
            self.w = R(0); self.srcAB = R(1) + R(2); self.srcC = R(3); self.r = self.srcAB + self.srcC
        elif op.startswith("v_"):
            self.kind = "valu"
            if base.startswith("v_cmp"):
                self.w = R(0); self.r = R(1) + R(2)
                if base.startswith("v_cmpx"): self.w += regs_of("exec")
            elif base in ("v_readfirstlane_b32", "v_readlane_b32"):
                self.w = R(0); self.r = R(1) + R(2)
            elif base.startswith("v_permlane") and "swap" in base:
                self.w = R(0) + R(1); self.r = R(0) + R(1)
            elif base in ("v_add_co_u32", "v_sub_co_u32", "v_addc_co_u32", "v_subb_co_u32"):
                self.w = R(0) + R(1); self.r = sum((R(i) for i in range(2, len(ops))), [])
            elif base == "v_nop":
                pass
            else:
                self.w = R(0); self.r = sum((R(i) for i in range(1, len(ops))), [])
                if base in ("v_fmac_f32", "v_dot2c_f32_bf16", "v_writelane_b32") or "dpp" in op or "row_" in mods or "quad_perm" in mods:
                    self.r += R(0)
                if base == "v_cndmask_b32" and len(ops) == 3: self.r += regs_of("vcc")
        elif op.startswith("ds_"):
            self.kind = "ds"
            if op.startswith("ds_read") or op.startswith("ds_bpermute") or op.startswith("ds_permute") or op.startswith("ds_swizzle") or "_rtn" in op:
                self.w = R(0); self.r = sum((R(i) for i in range(1, len(ops))), [])
            else:
                self.r = sum((R(i) for i in range(len(ops))), [])
        elif op.startswith("buffer_") :
            self.kind = "vmem"
            if op in ("buffer_inv", "buffer_wbl2"):
                pass
            elif "lds" in mods.split():
                self.r = sum((R(i) for i in range(len(ops))), []) + regs_of("m0")
            elif op.startswith("buffer_load"):
                self.w = R(0); self.r = sum((R(i) for i in range(1, len(ops))), [])
            else:
                self.r = sum((R(i) for i in range(len(ops))), [])
                if op.startswith("buffer_atomic") and "sc0" in mods.split(): self.w = R(0)
        elif op.startswith("global_"):
            self.kind = "vmem"
            if op.startswith("global_load_lds"):
                self.r = sum((R(i) for i in range(len(ops))), []) + regs_of("m0")
            elif op.startswith("global_load"):
                self.w = R(0); self.r = sum((R(i) for i in range(1, len(ops))), [])
            elif op.startswith("global_atomic") and "sc0" in mods.split():
                self.w = R(0); self.r = sum((R(i) for i in range(1, len(ops))), [])
            else:
                self.r = sum((R(i) for i in range(len(ops))), [])
        elif op.startswith("s_load") or op.startswith("s_buffer_load") or op in ("s_memtime", "s_memrealtime"):
            self.kind = "smem"
            self.w = R(0); self.r = sum((R(i) for i in range(1, len(ops))), [])
        elif op.startswith("s_"):
            self.kind = "salu"
            if op in ("s_branch",) or op.startswith("s_cbranch"):
                self.kind = "branch"; self.target = ops[0]
                if "vcc" in op: self.r = regs_of("vcc")
                if "exec" in op: self.r = regs_of("exec")
            elif op in ("s_nop", "s_waitcnt", "s_barrier", "s_endpgm", "s_setprio", "s_sleep"):
                pass
            elif op.startswith("s_cmp") or op.startswith("s_bitcmp"):
                self.r = R(0) + R(1)
            elif op == "s_setpc_b64":
                self.r = R(0)
            else:
                self.w = R(0); self.r = sum((R(i) for i in range(1, len(ops))), [])
                if "saveexec" in op: self.w += regs_of("exec"); self.r += regs_of("exec")
                if op in ("s_addk_i32", "s_mulk_i32"): self.r += R(0)
        else:
            raise ValueError("unknown op: " + text)
    def states(self):
        if self.kind in ("label", "dir"): return 0
        if self.op == "s_nop": return int(self.ops[0], 0) + 1
        return 1

def _ov(a, b):
    return bool(set(a) & set(b))

def need_states(p, c):
    n = 0
    pv = [x for x in p.w if x[0] in "va"]
    ps = [x for x in p.w if x[0] == "s"]
    pb = re.sub(r"_(e32|e64|dpp|sdwa)$", "", p.op); cb = re.sub(r"_(e32|e64|dpp|sdwa)$", "", c.op)
    if p.kind == "valu":
        if c.kind == "mfma" and _ov(pv, c.r): n = max(n, 3 if pb.startswith("v_dot") else 2)
        if c.kind == "valu":
            if cb in ("v_readfirstlane_b32", "v_readlane_b32") and _ov(pv, c.r): n = max(n, 1)
            if cb.startswith("v_permlane") and _ov(pv, c.r): n = max(n, 2)
            if ("dpp" in c.op or "row_" in c.mods or "quad_perm" in c.mods) and _ov(pv, c.r): n = max(n, 2)
            if pb in TRANS and cb not in TRANS and _ov(pv, c.r): n = max(n, 1)
            if pb in TRANS and cb in TRANS and _ov(pv, c.r): n = max(n, 1)
            if _ov(ps, c.r):
                n = max(n, 4 if cb in ("v_readlane_b32", "v_writelane_b32") else 2)
            if pb.startswith("v_dot") and (_ov(pv, c.r) or _ov(pv, c.w)):
                if not (cb == pb and not _ov(pv, sum((regs_of(o) for o in c.ops[1:3]), []))): n = max(n, 3)
            if ("op_sel" in p.mods or "sdwa" in p.op or "dst_sel" in p.mods) and (_ov(pv, c.r) or _ov(pv, c.w)): n = max(n, 1)
        if c.kind == "vmem" and _ov(ps, c.r): n = max(n, 5)
        if c.kind in ("salu", "branch", "smem") and _ov(ps, c.r): n = max(n, 1)
        if c.kind == "mfma" and _ov(ps, regs_of("exec")): n = max(n, 4)
    if p.kind == "mfma":
        big = p.passes == 8
        if c.kind == "mfma":
            if _ov(p.w, c.srcAB): n = max(n, 12 if big else 8)
            if _ov(p.w, c.srcC):
                if not (p.w == c.srcC and p.passes == c.passes): n = max(n, 10 if big else 6)
            if _ov(p.w, c.w) and not (p.w == c.srcC and p.passes == c.passes):
                n = max(n, 10 if big else 6)
        elif c.kind in ("valu", "ds", "vmem"):
            if _ov(p.w, c.r) or _ov(p.w, c.w): n = max(n, 12 if big else 8)
            if c.kind == "valu" and _ov(p.srcC, c.w): n = max(n, 7 if big else 3)
            if c.kind in ("ds", "vmem") and _ov(p.srcC, c.w): n = max(n, 7 if big else 3)
    if p.kind == "salu" and _ov(p.w, regs_of("m0")) and c.kind == "vmem" and _ov(c.r, regs_of("m0")): n = max(n, 1)
    if p.kind == "vmem" and ("x4" in p.op or "x3" in p.op) and ("store" in p.op):
        data = regs_of(p.ops[0]) if p.op.startswith("buffer") else regs_of(p.ops[1])
        if _ov(data, c.w): n = max(n, 2 if c.kind in ("valu", "mfma") else 1)
    if p.kind == "ds" and p.op in ("ds_write_b128", "ds_write_b96") :
        pass
    return n

class Asm:
    def __init__(self):
        self.I = []
        self.uid = 0
    def __call__(self, text):
        for l in text.split("\n"):
            if l.strip():
                self.I.append(Ins(l.strip()))
    def label(self, name): self(name + ":")
    def newlabel(self, p="L"):
        self.uid += 1
        return f"{p}_{self.uid}"
    def preds(self):
        lab = {i.label: k for k, i in enumerate(self.I) if i.kind == "label"}
        P = [[] for _ in self.I]
        for k, i in enumerate(self.I):
            if k + 1 < len(self.I) and i.op not in ("s_branch", "s_endpgm", "s_setpc_b64"):
                P[k + 1].append(k)
            if i.kind == "branch" and i.target in lab:
                P[lab[i.target]].append(k)
        return P
    def pad_hazards(self, verbose=False):
        I = self.I
        prev = {}; srcs = {}
        lab = {i.label: i for i in I if i.kind == "label"}
        for k, i in enumerate(I):
            p = I[k - 1] if k > 0 and I[k - 1].op not in ("s_branch", "s_endpgm", "s_setpc_b64") else None
            prev[id(i)] = p
            if i.kind == "branch" and i.target in lab:
                srcs.setdefault(id(lab[i.target]), []).append(i)
        def preds(n):
            r = list(srcs.get(id(n), ()))
            if prev[id(n)] is not None: r.append(prev[id(n)])
            return r
        out = []; total = 0
        for c in I:
            if c.kind not in ("label", "dir") and (c.r or c.w):
                worst = 0; why = None
                stack = [(p, 0) for p in preds(c)]; seen = set()
                while stack:
                    p, d = stack.pop()
                    if (id(p), d) in seen or d >= 13: continue
                    seen.add((id(p), d))
                    if p.kind in ("valu", "mfma", "salu", "vmem"):
                        n = need_states(p, c)
                        if n - d > worst: worst = n - d; why = p
                    for q in preds(p): stack.append((q, d + p.states()))
                if worst > 0:
                    if verbose: print(f"pad {worst} before '{c.text}' (after '{why.text}')", file=sys.stderr)
                    nop = Ins(f"s_nop {worst-1}")
                    prev[id(nop)] = prev[id(c)]; prev[id(c)] = nop
                    out.append(nop); total += worst
            out.append(c)
        self.I = out
        return total
    def check_waits(self, start=0, max_states=200000):
        lab = {i.label: k for k, i in enumerate(self.I) if i.kind == "label"}
        errs = set(); seen = set()
        stack = [(start, (), ())]
        n = 0
        while stack:
            pc, vm, lg = stack.pop()
            while pc < len(self.I):
                key = (pc, vm, lg)
                i = self.I[pc]
                if i.kind == "label" or i.kind == "branch":
                    if key in seen: break
                    seen.add(key)
                n += 1
                if n > max_states * 50: raise RuntimeError("check_waits: too many states")
                if i.op == "s_waitcnt":
                    t = i.text
                    m = re.search(r"vmcnt\((\d+)\)", t)
                    if m:
                        c = int(m.group(1)); vm = vm[len(vm) - c:] if c < len(vm) else vm
                        if c == 0: vm = ()
                    m = re.search(r"lgkmcnt\((\d+)\)", t)
                    if m:
                        c = int(m.group(1))
                        if c == 0: lg = ()
                        elif not any(e[1] == "smem" for e in lg):
                            lg = lg[len(lg) - c:] if c < len(lg) else lg
                elif i.kind not in ("label", "dir"):
                    touched = set(i.r) | set(i.w)
                    for q, nm in ((vm, "vm"), (lg, "lgkm")):
                        for e in q:
                            if e[0] & touched:
                                if not (e[0] & set(i.r)) and ((nm == "vm" and i.kind == "vmem") or (nm == "lgkm" and i.kind == "ds" and e[1] == "ds")):
                                    continue
                                errs.add((pc, e[2], nm))
                    if i.kind == "vmem":
                        vm = vm + ((frozenset(i.w), "vm", pc),)
                        if len(vm) > 63: vm = vm[-63:] if not any(e[0] for e in vm[:-63]) else vm
                    elif i.kind == "ds":
                        lg = lg + ((frozenset(i.w), "ds", pc),)
                    elif i.kind == "smem":
                        lg = lg + ((frozenset(i.w), "smem", pc),)
                    if len(vm) > 80: vm = vm[-80:]
                    if len(lg) > 40: lg = lg[-40:]
                if i.op == "s_endpgm" or i.op == "s_setpc_b64": break
                if i.kind == "branch":
                    if i.target in lab:
                        if i.op == "s_branch":
                            pc = lab[i.target]; continue
                        stack.append((lab[i.target], vm, lg))
                pc += 1
        for pc, src, nm in sorted(errs):
            print(f"WAIT ERROR ({nm}): '{self.I[pc].text}' @{pc} uses result of '{self.I[src].text}' @{src}", file=sys.stderr)
        return len(errs)
    def text(self):
        out = []
        for i in self.I:
            out.append(i.text if i.kind in ("label", "dir") else "    " + i.text)
        return "\n".join(out) + "\n"

class VmTracker:
    def __init__(self, a): self.a = a; self.q = []
    def issue(self, text, tag=None):
        self.a(text); self.q.append(tag)
    def n_after(self, tag):
        idx = max(k for k, t in enumerate(self.q) if t == tag)
        return len(self.q) - 1 - idx
    def wait(self, tag, extra=""):
        if tag not in self.q: return
        n = self.n_after(tag)
        assert n <= 63, n
        self.a(f"s_waitcnt vmcnt({n}) {extra}".strip())
        idx = len(self.q) - n
        self.q = self.q[idx:]
    def wait_all(self):
        self.a("s_waitcnt vmcnt(0)"); self.q = []

def kernel_header(name):
    return f".globl {name}\n.p2align 8\n.type {name},@function\n{name}:"
def kernel_desc(name, vgpr=256, sgpr=102, accum=None):
    accum = accum or min(256, (vgpr + 3) // 4 * 4)
    return (f".p2align 6\n.amdhsa_kernel {name}\n  .amdhsa_next_free_vgpr {vgpr}\n  .amdhsa_next_free_sgpr {sgpr}\n  .amdhsa_accum_offset {accum}\n"
            "  .amdhsa_group_segment_fixed_size 0\n  .amdhsa_kernarg_size 80\n  .amdhsa_user_sgpr_count 2\n  .amdhsa_user_sgpr_kernarg_segment_ptr 1\n"
            "  .amdhsa_system_sgpr_workgroup_id_x 1\n  .amdhsa_float_denorm_mode_32 3\n.end_amdhsa_kernel")
```

```python
import sys, copy
from asmlib import Asm, kernel_header, kernel_desc

NAME = "recurrent_scan__sliding_block__glu_gated_bilinear__prompt_kernel"

WS_NONCE = 0
WS_FA = 4096
WS_FB = 16384
WS_FO = 32768
WS_ST = 65536
WS_CS = 131072
WS_PROF = 262144
WS_Q = 1 << 20
WS_K = 3 << 20
WS_V = 5 << 20
WS_ACT = 7 << 20
WS_SIZE = 16 << 20
OOB = 0x7ff00000
SPIN_MAX = 20000

class Cfg:
    rot1 = 1
    rot4 = 1
    prof = 0
    nt_x = ""
    nt_w = ""
    nt_d = ""
    dist = 4
    epiA_per = 6
    flagA_slot = 40
    pollA_slot = 46
    chkA_slot = 58
    hload_at = 1
    o_wait_t = 2
    o_poll_t = 4
    o_chk_t = 5

class Trk:
    def __init__(s, a, cnt, lim):
        s.a = a; s.cnt = cnt; s.lim = lim; s.q = []
    def issue(s, text, tag=None):
        s.a(text); s.q.append(tag)
    def need(s, tags):
        if not isinstance(tags, (list, tuple, set)): tags = [tags]
        idx = -1
        for k, t in enumerate(s.q):
            if t in tags and t is not None: idx = k
        if idx < 0: return None
        return len(s.q) - 1 - idx
    def popto(s, n):
        s.q = s.q[len(s.q) - n:] if n > 0 else []
    def wait(s, tags):
        n = s.need(tags)
        if n is None: return
        if n > s.lim: n = s.lim
        s.a(f"s_waitcnt {s.cnt}({n})"); s.popto(n)
    def wait_all(s):
        s.a(f"s_waitcnt {s.cnt}(0)"); s.q = []

class G:
    def __init__(g, cfg):
        g.cfg = cfg
        g.a = Asm()
        g.vm = Trk(g.a, "vmcnt", 63)
        g.ds = Trk(g.a, "lgkmcnt", 15)
        g.nstamp = 0
    def snap(g): return (list(g.vm.q), list(g.ds.q))
    def restore(g, s): g.vm.q = list(s[0]); g.ds.q = list(s[1])
    def wait(g, vm=None, ds=None):
        nv = g.vm.need(vm) if vm is not None else None
        nd = g.ds.need(ds) if ds is not None else None
        p = []
        if nv is not None:
            nv = min(nv, 63); p.append(f"vmcnt({nv})"); g.vm.popto(nv)
        if nd is not None:
            assert nd <= 15, nd
            p.append(f"lgkmcnt({nd})"); g.ds.popto(nd)
        if p: g.a("s_waitcnt " + " ".join(p))
    def stamp(g, i):
        if not g.cfg.prof: return
        g.a(f"s_memtime s[{SP+2*i}:{SP+2*i+1}]")
        g.ds.wait_all()

def vr(b, n=4): return f"v[{b}:{b+n-1}]"
def sr(b, n=4): return f"s[{b}:{b+n-1}]"

sW, sTag, sWB, sT0, sT1, sT2, sT3, sT4 = 4, 5, 6, 7, 8, 9, 10, 11
sHead, sR, sTb4, sCt, sQ4, sKc4, sSpin, sQb = 12, 13, 14, 15, 16, 17, 18, 19
sEx = 20
sT5, sT6 = 22, 23
rWS, rX, rD, rO, rOUT, rW0, rW1, rW2, rG, rU = 24, 28, 32, 36, 40, 44, 48, 52, 56, 60
sRb, sJ, sKc, sC0, sC1, sC2, sC3, sStr12, sXrow, sTb1, sDst0, sScale = 64, 65, 66, 67, 68, 69, 70, 71, 72, 73, 74, 75
sMask = 44
SP = 76
sKcB, sPairA, sDcol, sRot4 = 100, 101, 3, 2

vL = 0
vXa = 1
vTr = 5
vWg, vWd = 8, 9
vXg, vWq, vW12 = 10, 11, 12
vCS = 10
vRs, vRq = 22, 23
vST = 24
vRing = 28
aB, aA, vX = 48, 80, 128

SLOT = 8192
def tr_base(slot): return (vTr + slot // 8, (slot % 8) * SLOT)

A_XSLOT = lambda s: 2 * (s & 3)
A_WSLOT = lambda s, t: 8 + 3 * (s & 3) + t
B_SLOTS = [(0, 1), (8, 9), (10, 11), (2, 3), (12, 13), (4, 5), (14, 15), (6, 7)]
P4_GROUP = [2, 0, 3, 1, 4, 2, 0, 3, 1]
KSLOT, VSLOT = 16, 18

def dma(g, voff, srd, soff, slot, tag, nt=""):
    g.a(f"s_add_u32 m0, s{sWB}, {slot*SLOT}")
    return lambda: g.vm.issue(f"buffer_load_dwordx4 v{voff}, {sr(srd)}, s{soff} offen {nt} lds".replace("  ", " "), tag)

def fill_dma_A(g, s, parts=(0, 1, 2, 3, 4)):
    c = g.cfg; a = g.a; F = []
    def x(lo):
        def f():
            d = dma(g, vXg, rX, sT0, A_XSLOT(s) + (0 if lo else 1), f"A{s}", c.nt_x)
            if lo:
                a(f"s_lshl_b32 s{sT0}, s{sKc}, 7")
                a(f"s_add_u32 s{sT0}, s{sT0}, s{sXrow}")
            else: a(f"s_add_u32 s{sT0}, s{sT0}, 65536")
            d()
        return f
    def w(t):
        def f():
            d = dma(g, (vWq, vW12, vW12)[t], (rW0, rW1, rW2)[t], sT0, A_WSLOT(s, t), f"A{s}", c.nt_w)
            if t == 0: a(f"s_mul_i32 s{sT0}, s{sKc}, 196608")
            else: a(f"s_mul_i32 s{sT0}, s{sKc}, s{sStr12}")
            a(f"s_add_u32 s{sT0}, s{sT0}, s{sC0+t}")
            d()
        return f
    allp = [x(True), x(False), w(0), w(1), w(2)]
    for p in parts: F.append(allp[p])
    return F
def adv_kc(g, reg):
    g.a(f"s_add_u32 s{reg}, s{reg}, 1")
    g.a(f"s_and_b32 s{reg}, s{reg}, 7")

def fill_dma_B(g, s, t):
    def f():
        a = g.a
        d = dma(g, vWg, (rG, rU)[t], sT0, B_SLOTS[s][t], f"B{s}", g.cfg.nt_w)
        a(f"s_mul_i32 s{sT0}, s{sKcB}, 229376")
        a(f"s_add_u32 s{sT0}, s{sT0}, s{sC3}")
        d()
        if t == 1: adv_kc(g, sKcB)
    return f

def fill_dma_4(g, t, q):
    def f():
        a = g.a
        slot = P4_GROUP[t] * 4 + q
        if t < 7:
            d = dma(g, vWd, rD, sT0, slot, f"D{t}", g.cfg.nt_d)
            a(f"s_add_u32 s{sT0}, s{sRot4}, {t}")
            a(f"s_cmp_ge_u32 s{sT0}, 7")
            a(f"s_cselect_b32 s{sT1}, 7, 0")
            a(f"s_sub_u32 s{sT0}, s{sT0}, s{sT1}")
            a(f"s_add_u32 s{sT0}, s{sT0}, {7*q}")
            a(f"s_lshl_b32 s{sT0}, s{sT0}, 16")
            a(f"s_add_u32 s{sT0}, s{sT0}, s{sDcol}")
            d()
        else:
            d = dma(g, vWd, rO, sT0, slot, f"D{t}", g.cfg.nt_d)
            a(f"s_add_u32 s{sT0}, s{sDcol}, {(2*q+t-7) << 16}")
            d()
    return f

def build_srd(a, r, p, size):
    a(f"s_mov_b32 s{r}, s{p}\ns_mov_b32 s{r+1}, s{p+1}\ns_mov_b32 s{r+2}, {size}\ns_mov_b32 s{r+3}, 0x20000")

def spin(g, name, loads, check):
    a = g.a
    ok = a.newlabel("Lok_" + name); lp = a.newlabel("Lsp_" + name)
    check()
    a(f"s_cbranch_vccz {ok}")
    a(f"s_mov_b32 s{sSpin}, 0")
    a.label(lp)
    for l in loads: a(l)
    a("s_waitcnt vmcnt(0)")
    check()
    a(f"s_cbranch_vccz {ok}")
    a(f"s_add_u32 s{sSpin}, s{sSpin}, 1")
    a(f"s_cmp_lt_u32 s{sSpin}, {SPIN_MAX}")
    a(f"s_cbranch_scc1 {lp}")
    a.label(ok)

def wave_sum(a, v, t):
    for r in (1, 2, 4, 8):
        a(f"v_add_f32_dpp v{v}, v{v}, v{v} row_ror:{r} row_mask:0xf bank_mask:0xf")
    a(f"v_mov_b32 v{t}, v{v}")
    a(f"v_permlane16_swap_b32 v{v}, v{t}")
    a(f"v_add_f32 v{v}, v{v}, v{t}")
    a(f"v_mov_b32 v{t}, v{v}")
    a(f"v_permlane32_swap_b32 v{v}, v{t}")
    a(f"v_add_f32 v{v}, v{v}, v{t}")

def prologue(g):
    a = g.a; c = g.cfg
    a("s_cmp_ge_u32 s2, 256\ns_cbranch_scc1 L_exit")
    a("s_load_dwordx16 s[4:19], s[0:1], 0")
    a("s_load_dwordx4 s[20:23], s[0:1], 64")
    a("s_getpc_b64 s[94:95]")
    a.label("L_pc")
    a("v_lshlrev_b32 v1, 7, v0")
    a("v_min_u32 v1, L_end-L_pc-4, v1")
    g.vm.issue("global_load_dword v255, v1, s[94:95]", "code")
    if c.prof: a(f"s_memrealtime s[{SP+22}:{SP+23}]\ns_memtime s[{SP}:{SP+1}]")
    a("v_lshrrev_b32 v1, 6, v0")
    a("v_and_b32 v0, 63, v0")
    a("v_readfirstlane_b32 s3, v1")
    xcd, slot = 96, 97
    a(f"s_and_b32 s{xcd}, s2, 7")
    a(f"s_lshr_b32 s{slot}, s2, 3")
    a(f"s_and_b32 s{sRb}, s{xcd}, 1\ns_lshl_b32 s{sRb}, s{sRb}, 3")
    a(f"s_and_b32 s{sJ}, s{slot}, 7\ns_add_u32 s{sRb}, s{sRb}, s{sJ}")
    a(f"s_lshr_b32 s{sJ}, s{slot}, 3\ns_lshl_b32 s{sJ}, s{sJ}, 2")
    a(f"s_lshr_b32 s{sKc}, s{xcd}, 1\ns_add_u32 s{sJ}, s{sJ}, s{sKc}")
    a("v_lshrrev_b32 v48, 3, v0\nv_and_b32 v49, 7, v0\nv_mov_b32 v50, v1")
    a("v_lshl_add_u32 v51, v50, 3, v48")
    a("v_bfe_u32 v52, v51, 1, 3\nv_xor_b32 v52, v52, v49\nv_lshlrev_b32 v52, 4, v52")
    a(f"v_lshl_add_u32 v{vXg}, v51, 10, v52")
    a("v_bfe_u32 v52, v51, 1, 1\nv_lshlrev_b32 v52, 2, v52\nv_xor_b32 v52, v52, v49\nv_lshlrev_b32 v52, 4, v52")
    a(f"v_mul_u32_u24 v{vWq}, 3072, v51\nv_add_u32 v{vWq}, v{vWq}, v52")
    a(f"v_mul_u32_u24 v{vWg}, 3584, v51\nv_add_u32 v{vWg}, v{vWg}, v52")
    a(f"v_lshl_add_u32 v{vWd}, v51, 10, v52")
    a("v_and_b32 v52, 31, v0\nv_and_b32 v53, 3, v50\nv_lshl_add_u32 v52, v53, 5, v52")
    a("v_bfe_u32 v53, v52, 1, 3\nv_lshrrev_b32 v54, 5, v0\nv_xor_b32 v53, v53, v54\nv_lshlrev_b32 v53, 4, v53")
    a(f"v_lshl_add_u32 v{vXa}, v52, 7, v53")
    for k in (1, 2, 3): a(f"v_xor_b32 v{vXa+k}, {32*k}, v{vXa}")
    a("v_bfe_u32 v52, v0, 2, 2")
    a("v_lshl_add_u32 v53, v54, 3, v52")
    a("v_bfe_u32 v55, v0, 4, 1\nv_bfe_u32 v56, v0, 1, 1\nv_lshl_add_u32 v55, v55, 1, v56")
    a("v_lshrrev_b32 v56, 2, v50\nv_lshrrev_b32 v52, 1, v52\nv_xor_b32 v56, v56, v52")
    a("v_lshl_add_u32 v55, v56, 2, v55\nv_lshlrev_b32 v55, 4, v55")
    a("v_and_b32 v56, 1, v0\nv_lshl_add_u32 v55, v56, 3, v55")
    a(f"v_lshl_add_u32 v{vTr}, v53, 7, v55")
    a(f"v_add_u32 v{vTr+1}, 65536, v{vTr}\nv_add_u32 v{vTr+2}, 131072, v{vTr}")
    a("v_lshl_add_u32 v57, v50, 5, v48")
    a("v_lshlrev_b32 v58, 4, v49")
    a("v_lshlrev_b32 v59, 4, v0")
    a(f"s_cmp_lt_u32 s{sJ}, 4")
    a("s_cbranch_scc0 L_typeP")
    a(f"s_lshl_b32 s{sC1}, s{sJ}, 7")
    a(f"s_add_u32 s{sC2}, s{sC1}, 1024\ns_add_u32 s{sC0}, s{sC1}, 2048")
    a(f"s_mov_b32 s{sC3}, s{sC1}")
    a(f"s_mov_b32 s{sStr12}, 196608")
    a(f"s_mov_b32 s{sPairA}, 0")
    a(f"v_mov_b32 v{vW12}, v{vWq}")
    a("s_waitcnt lgkmcnt(0)")
    build_srd(a, rW1, 6, 1572864); build_srd(a, rW2, 6, 1572864)
    a("s_branch L_typeD")
    a.label("L_typeP")
    a(f"s_sub_u32 s{sC1}, s{sJ}, 4")
    a(f"s_and_b32 s{sC0}, s{sC1}, 3\ns_add_u32 s{sC0}, s{sC0}, 4\ns_lshl_b32 s{sC0}, s{sC0}, 7")
    a(f"s_lshr_b32 s{sC2}, s{sC1}, 2\ns_lshl_b32 s{sC2}, s{sC2}, 10\ns_add_u32 s{sC0}, s{sC0}, s{sC2}")
    a(f"s_lshl_b32 s{sPairA}, s{sC1}, 1\ns_add_u32 s{sPairA}, s{sPairA}, 4")
    a(f"s_lshl_b32 s{sC1}, s{sPairA}, 7\ns_mov_b32 s{sC2}, s{sC1}\ns_add_u32 s{sC3}, s{sC1}, 128")
    a(f"s_mov_b32 s{sStr12}, 229376")
    a(f"v_mov_b32 v{vW12}, v{vWg}")
    a("s_waitcnt lgkmcnt(0)")
    build_srd(a, rW1, 12, 1835008); build_srd(a, rW2, 14, 1835008)
    a.label("L_typeD")
    build_srd(a, rWS, 22, WS_SIZE)
    build_srd(a, rX, 4, 2097152)
    g.vm.issue(f"buffer_load_dword v60, off, {sr(rWS)}, 0 sc1", "nonce")
    build_srd(a, rW0, 6, 1572864)
    build_srd(a, rG, 12, 1835008); build_srd(a, rU, 14, 1835008)
    build_srd(a, rD, 16, 1835008); build_srd(a, rO, 8, 524288); build_srd(a, rOUT, 18, 2097152)
    a(f"s_mov_b32 s{sW}, s3\ns_lshl_b32 s{sWB}, s3, 10")
    a(f"s_lshl_b32 s{sXrow}, s{sRb}, 17")
    a(f"s_lshl_b32 s{sT0}, s{sJ}, 3\ns_add_u32 s{sT0}, s{sT0}, s{sW}\ns_lshl_b32 s{sT1}, s{sRb}, 7\ns_add_u32 s{sT4}, s{sT0}, s{sT1}")
    a(f"s_lshl_b32 s{sT0}, s{sT4}, 10")
    g.vm.issue(f"buffer_load_dwordx4 v[64:67], v59, {sr(rX)}, s{sT0} offen", "strow")
    a(f"s_cmp_ge_u32 s{sRb}, 5\ns_cselect_b32 s{sT5}, 1, 0\ns_mul_i32 s{sT1}, s{sT5}, 5\ns_sub_u32 s{sT6}, s{sRb}, s{sT1}")
    lcs = a.newlabel("Lcs");
    a(f"s_cmp_lt_u32 s{sJ}, 4\ns_cselect_b32 s{sT1}, 3, 1\ns_cmp_lt_u32 s{sT6}, s{sT1}\ns_cselect_b32 s{sT0}, 0, 512\ns_add_u32 s{sT0}, s{sT0}, 3072")
    a(f"v_mul_lo_u32 v57, v57, s{sT0}\nv_add_u32 v57, v57, v58")
    a(f"s_cmp_ge_u32 s{sRb}, 10\ns_cselect_b32 s{sT2}, {OOB}, 0\nv_or_b32 v57, s{sT2}, v57")
    a(f"s_mul_i32 s{sT1}, s{sT0}, s{sT5}\ns_lshl_b32 s{sT1}, s{sT1}, 8")
    a(f"s_lshl_b32 s{sT0}, s{sT0}, 3")
    labs = [a.newlabel("Lcs") for _ in range(5)]; done = a.newlabel("Lcsd")
    q0 = list(g.vm.q)
    for lc in range(5):
        if lc < 4:
            a(f"s_cmp_eq_u32 s{sT6}, {lc}\ns_cbranch_scc0 {labs[lc+1]}")
        a(f"s_add_u32 s{sT1}, s{sT1}, s{(sC0, sC1, sC2, sC3, sC3)[lc]}")
        g.vm.q = list(q0)
        for i in range(4):
            g.vm.issue(f"buffer_load_dwordx4 {vr(80+4*i)}, v57, {sr((rW0, rW1, rW2, rG, rU)[lc])}, s{sT1} offen", "csrow")
            if i < 3: a(f"s_add_u32 s{sT1}, s{sT1}, s{sT0}")
        if lc < 4:
            a(f"s_branch {done}")
            a.label(labs[lc + 1])
    a.label(done)
    if c.rot1:
        a(f"s_lshr_b32 s{sT0}, s{sJ}, 2\ns_lshl_b32 s{sT0}, s{sT0}, 1\ns_add_u32 s{sKc}, s{sRb}, s{sT0}\ns_and_b32 s{sKc}, s{sKc}, 7")
        if c.rot1 == 2: a(f"s_and_b32 s{sKc}, s{sKc}, 4")
        if c.rot1 == 3: a(f"s_and_b32 s{sKc}, s{sKc}, 6")
    else:
        a(f"s_mov_b32 s{sKc}, 0")
    a(f"s_mov_b32 s{sKcB}, s{sKc}")
    for s in range(3):
        for f in fill_dma_A(g, s): f()
        adv_kc(g, sKc)
    for f in fill_dma_A(g, 3, (0, 1, 2, 3)): f()
    a(f"s_and_b32 s{sHead}, s{slot}, 3\ns_lshl_b32 s{sT0}, s{xcd}, 2\ns_add_u32 s{sHead}, s{sHead}, s{sT0}")
    a(f"s_lshr_b32 s{sR}, s{slot}, 2\ns_lshl_b32 s{sQb}, s{sR}, 3\ns_add_u32 s{sQb}, s{sQb}, s{sW}")
    a(f"s_lshr_b32 s{sT1}, s{slot}, 3\ns_add_u32 s{sT0}, s{sT0}, s{sT1}\ns_lshl_b32 s{sTb4}, s{sT0}, 1\ns_lshr_b32 s{sT0}, s{sW}, 2\ns_add_u32 s{sTb4}, s{sTb4}, s{sT0}")
    a(f"s_and_b32 s{sCt}, s{slot}, 7\ns_lshl_b32 s{sDcol}, s{sCt}, 7\ns_and_b32 s{sQ4}, s{sW}, 3")
    if c.prof: a(f"s_mov_b32 s{xcd}, s2")
    if c.rot4:
        a(f"s_lshl_b32 s{sT1}, s{sT1}, 1\ns_add_u32 s{sT1}, s{sT1}, s{sCt}")
        a(f"s_cmp_ge_u32 s{sT1}, 7\ns_cselect_b32 s{sT0}, 7, 0\ns_sub_u32 s{sRot4}, s{sT1}, s{sT0}")
    else:
        a(f"s_mov_b32 s{sRot4}, 0")
    a(f"s_and_b32 s{sT0}, s{sW}, 3\ns_lshl_b32 s{sTb1}, s{sRb}, 2\ns_add_u32 s{sTb1}, s{sTb1}, s{sT0}")
    a(f"s_mov_b32 s{sEx}, 0x0000ffff\ns_mov_b32 s{sEx+1}, 0x0000ffff")
    g.vm.wait("strow")
    a(f"v_readfirstlane_b32 s{sTag}, v60")
    a(f"s_mul_i32 s{sTag}, s{sTag}, 0x9E3779B1\ns_add_u32 s{sTag}, s{sTag}, 0x7F4A7C15")
    for i in range(4):
        a(f"v_lshlrev_b32 v{68+2*i}, 16, v{64+i}\nv_and_b32 v{69+2*i}, 0xffff0000, v{64+i}")
    a("v_add_f32 v64, v68, v69\nv_add_f32 v65, v70, v71\nv_add_f32 v66, v72, v73\nv_add_f32 v67, v74, v75")
    a("v_add_f32 v64, v64, v65\nv_add_f32 v66, v66, v67\nv_add_f32 v64, v64, v66")
    wave_sum(a, 64, 65)
    a("v_mul_f32 v64, 0xbb000000, v64")
    for i in range(8): a(f"v_add_f32 v{68+i}, v{68+i}, v64")
    a("v_mul_f32 v66, v68, v68\nv_mul_f32 v67, v69, v69")
    for i in range(2, 8, 2): a(f"v_fmac_f32 v66, v{68+i}, v{68+i}\nv_fmac_f32 v67, v{69+i}, v{69+i}")
    a("v_add_f32 v66, v66, v67")
    wave_sum(a, 66, 65)
    a("v_mov_b32 v65, 0x3727c5ac\nv_fmac_f32 v65, 0x3b000000, v66")
    a("v_rsq_f32 v70, v65")
    a("v_cvt_pk_bf16_f32 v68, v64, v64\nv_lshlrev_b32 v68, 16, v68\nv_sub_f32 v68, v64, v68\nv_cvt_pk_bf16_f32 v68, v64, v68")
    a(f"v_mov_b32 v69, s{sTag}\nv_mov_b32 v71, s{sTag}")
    a(f"v_cmp_eq_u32 vcc, 0, v0\nv_mov_b32 v61, {OOB}\nv_cndmask_b32 v61, v61, 0, vcc")
    a(f"s_lshl_b32 s{sT0}, s{sT4}, 4\ns_add_u32 s{sT0}, s{sT0}, {WS_ST}")
    g.vm.issue(f"buffer_store_dwordx4 v[68:71], v61, {sr(rWS)}, s{sT0} offen sc1", "st_st")
    g.vm.wait("csrow")
    skip = a.newlabel("Lcskip")
    a(f"s_cmp_ge_u32 s{sRb}, 10\ns_cbranch_scc1 {skip}")
    for k in range(4):
        a(f"v_lshlrev_b32 v{96+2*k}, 16, v{80+k}\nv_and_b32 v{97+2*k}, 0xffff0000, v{80+k}")
    for i in range(1, 4):
        for k in range(4):
            a(f"v_lshlrev_b32 v104, 16, v{80+4*i+k}\nv_and_b32 v105, 0xffff0000, v{80+4*i+k}")
            a(f"v_add_f32 v{96+2*k}, v{96+2*k}, v104\nv_add_f32 v{97+2*k}, v{97+2*k}, v105")
    for k in range(4): a(f"v_permlane32_swap_b32 v{96+2*k}, v{97+2*k}")
    for k in range(4): a(f"v_add_f32 v{96+2*k}, v{96+2*k}, v{97+2*k}")
    a("v_permlane16_swap_b32 v96, v98\nv_permlane16_swap_b32 v100, v102")
    a("v_add_f32 v96, v96, v98\nv_add_f32 v100, v100, v102")
    a("v_add_f32_dpp v96, v96, v96 row_ror:8 row_mask:0xf bank_mask:0xf")
    a("v_add_f32_dpp v100, v100, v100 row_ror:8 row_mask:0xf bank_mask:0xf")
    a("v_and_b32 v97, 8, v0\nv_cmp_eq_u32 vcc, 0, v97\nv_cndmask_b32 v96, v100, v96, vcc")
    a("v_lshlrev_b32 v98, 3, v49\nv_lshrrev_b32 v97, 1, v97\nv_add_u32 v98, v98, v97")
    a("v_bfe_u32 v97, v0, 4, 1\nv_lshl_add_u32 v98, v97, 1, v98\nv_add_u32 v98, v98, v54")
    a(f"v_lshlrev_b32 v98, 2, v98\nv_lshl_add_u32 v98, v50, 8, v98\nv_add_u32 v98, {19*SLOT}, v98")
    a("ds_write_b32 v98, v96")
    a.label(skip)
    a(f"v_lshl_add_u32 v62, v50, 3, v49\nv_lshlrev_b32 v63, 3, v62\nv_lshlrev_b32 v62, 2, v62\nv_lshl_add_u32 v62, v48, 8, v62\nv_add_u32 v62, {19*SLOT}, v62")
    a(f"v_cmp_gt_u32 vcc, 8, v0\nv_mov_b32 v61, {OOB}\nv_cndmask_b32 v63, v61, v63, vcc\nv_or_b32 v63, s{sT2}, v63")
    a(f"s_mul_i32 s{sT0}, s{sJ}, 5\ns_add_u32 s{sT0}, s{sT0}, s{sT6}\ns_lshl_b32 s{sT0}, s{sT0}, 9\ns_mul_i32 s{sT1}, s{sT5}, 40960\ns_add_u32 s{sT0}, s{sT0}, s{sT1}\ns_add_u32 s{sT4}, s{sT0}, {WS_CS}")
    g.stamp(1)
    g.vm.wait("A0")
    a("s_waitcnt lgkmcnt(0)\ns_barrier")
    g.stamp(2)

def colsum2(g):
    a = g.a
    F = []
    F.append(lambda: g.ds.issue("ds_read_b32 v64, v62", "cs2"))
    def f1():
        g.ds.wait("cs2")
        a("v_mov_b32 v65, v64")
        a("v_permlane32_swap_b32 v64, v65\nv_add_f32 v64, v64, v65\nv_mov_b32 v65, v64")
    def f2():
        a("v_permlane16_swap_b32 v64, v65\nv_add_f32 v64, v64, v65")
    def f3():
        a("v_add_f32_dpp v64, v64, v64 row_ror:8 row_mask:0xf bank_mask:0xf")
        a("v_cvt_pk_bf16_f32 v66, v64, v64\nv_lshlrev_b32 v66, 16, v66\nv_sub_f32 v66, v64, v66\nv_cvt_pk_bf16_f32 v66, v64, v66")
        a(f"v_mov_b32 v67, s{sTag}")
    def f4():
        g.vm.issue(f"buffer_store_dwordx2 v[66:67], v63, {sr(rWS)}, s{sT4} offen sc1", "st_cs")
    return F + [None, None, f1, f2, f3, f4]

class Pipe:
    def __init__(p, g, ring, nring):
        p.g = g; p.ring = ring; p.n = nring; p.cnt = 0
    def reg(p, i): return p.ring + 4 * (i % p.n)

def gran_loads():
    L = [f"buffer_load_dwordx4 {vr(vST)}, v48, {sr(rWS)}, s{sT5} offen sc1"]
    for t in range(5):
        L.append(f"buffer_load_dwordx2 {vr(vCS+2*t, 2)}, v49, {sr(rWS)}, s{sT6} offen offset:{512*t} sc1")
    return L

def pass_A(g, swap0):
    a = g.a; c = g.cfg; D = c.dist; NR = 5
    NS = 96
    def wread(i):
        r = vRing + 4 * (i % NR)
        if i < NS:
            s, k = divmod(i, 12); ks, t = divmod(k, 3); slot = A_WSLOT(s, t)
        else:
            s, k = divmod(i - NS, 8); ks, t = divmod(k, 2); slot = B_SLOTS[s][t]
        b, off = tr_base(slot)
        g.ds.issue(f"ds_read_b64_tr_b16 {vr(r,2)}, v{b} offset:{off+ks*2048}", f"w{i}")
        g.ds.issue(f"ds_read_b64_tr_b16 {vr(r+2,2)}, v{b} offset:{off+ks*2048+512}", f"w{i}")
    def xread(s, ks):
        g.ds.issue(f"ds_read_b128 {vr(vX+16*s+4*ks)}, v{vXa+ks} offset:{A_XSLOT(s)*SLOT}", f"x{s}_{ks}")
    g.wread = wread
    xread(0, 0)
    for i in range(D):
        wread(i)
        if i == 0: xread(0, 1)
    extra = {i: [] for i in range(NS)}
    extra[2].append(lambda: xread(0, 2)); extra[4].append(lambda: xread(0, 3))
    for k, f in enumerate(colsum2(g)):
        if f: extra[k].append(f)
    BAR = 6
    for s in range(8):
        F = []
        if s == 0:
            F = fill_dma_A(g, 3, (4,)) + [lambda: adv_kc(g, sKc)]
        elif s <= 4:
            F = fill_dma_A(g, s + 3) + [lambda: adv_kc(g, sKc)]
        elif s == 5:
            F = [fill_dma_B(g, 0, 0), fill_dma_B(g, 0, 1), fill_dma_B(g, 1, 0), fill_dma_B(g, 1, 1), fill_dma_B(g, 2, 0)]
        elif s == 6:
            F = [fill_dma_B(g, 2, 1), fill_dma_B(g, 3, 0), fill_dma_B(g, 3, 1), fill_dma_B(g, 4, 0), fill_dma_B(g, 4, 1)]
        else:
            F = [fill_dma_B(g, 5, 0), fill_dma_B(g, 5, 1), fill_dma_B(g, 6, 0), fill_dma_B(g, 6, 1)]
        for k, f in enumerate(F): extra[12 * s + min(BAR + k, 11)].append(f)
        if s < 7:
            for ks in range(4):
                pos = 12 * s + BAR + 1 + ks if ks < 2 else 12 * (s + 1) + 2 * ks - 3
                extra[pos].append(lambda s=s, ks=ks: xread(s + 1, ks))
    def gaddr():
        a(f"v_and_b32 v48, 31, v{vL}\nv_lshlrev_b32 v49, 3, v48\nv_lshlrev_b32 v48, 4, v48")
        a(f"v_lshrrev_b32 v50, 5, v{vL}\nv_mul_u32_u24 v50, 40960, v50\nv_add_u32 v49, v49, v50")
        a(f"s_lshl_b32 s{sT5}, s{sTb1}, 9\ns_add_u32 s{sT5}, s{sT5}, {WS_ST}")
        a(f"s_mul_i32 s{sT6}, s{sJ}, 2560\ns_lshr_b32 s{sT0}, s{sW}, 2\ns_lshl_b32 s{sT0}, s{sT0}, 8\ns_add_u32 s{sT6}, s{sT6}, s{sT0}\ns_add_u32 s{sT6}, s{sT6}, {WS_CS}")
    extra[12 * 6 + 0].append(gaddr)
    for k, l in enumerate(gran_loads()):
        extra[12 * 6 + 1 + k // 2].append(lambda l=l: g.vm.issue(l, "gran"))
    for i in range(NS):
        s, k = divmod(i, 12); ks, t = divmod(k, 3)
        g.ds.wait([f"w{i}", f"x{s}_{ks}"])
        r = vr(vRing + 4 * (i % NR)); x = vr(vX + 16 * s + 4 * ks); acc = vr(aA + 16 * t, 16)
        cin = acc if i >= 3 else "0"
        if t == 0 and swap0: a(f"v_mfma_f32_32x32x16_bf16 {acc}, {x}, {r}, {cin}")
        else: a(f"v_mfma_f32_32x32x16_bf16 {acc}, {r}, {x}, {cin}")
        if k == BAR:
            g.vm.wait(f"A{s+1}" if s < 7 else "B0")
            a("s_barrier")
        wread(i + D)
        for f in extra[i]: f()

def gran_check(g):
    a = g.a
    def chk():
        a(f"v_min3_u32 v50, v{vCS+1}, v{vCS+3}, v{vCS+5}\nv_max3_u32 v51, v{vCS+1}, v{vCS+3}, v{vCS+5}")
        a(f"v_min3_u32 v50, v50, v{vCS+7}, v{vCS+9}\nv_max3_u32 v51, v51, v{vCS+7}, v{vCS+9}")
        a(f"v_min3_u32 v50, v50, v{vST+1}, v{vST+3}\nv_max3_u32 v51, v51, v{vST+1}, v{vST+3}")
        a(f"v_xor_b32 v50, s{sTag}, v50\nv_xor_b32 v51, s{sTag}, v51\nv_or_b32 v50, v50, v51\nv_cmp_ne_u32 vcc, 0, v50")
    g.vm.wait("gran")
    spin(g, "gran", gran_loads(), chk)
    for t in range(5): a(f"v_and_b32 v{vCS+2*t+1}, 0xffff, v{vCS+2*t}")
    a(f"v_mov_b32 v{vCS+10}, 0\nv_mov_b32 v{vCS+11}, 0")
    a(f"v_mov_b32 v{vRs}, v{vST+2}\nv_lshrrev_b32 v{vST+1}, 16, v{vST}")
    a(f"v_and_b32 v{vST+2}, 0xffff, v{vST}\nv_lshl_or_b32 v{vST}, v{vST}, 16, v{vST+2}")
    a(f"v_mov_b32 v{vST+2}, 0\nv_mov_b32 v{vST+3}, 0")

vL16, vVo, vF0, vTagV = 1, 2, 3, 4

def epi_qk(g, acc, scale_reg, sdst_fn, tag):
    a = g.a; F = []
    for hh in range(2):
        b = acc + 8 * hh
        for i in range(8): F.append(lambda b=b, i=i: a(f"v_mul_f32 v{b+i}, v{b+i}, v{scale_reg}"))
        for i in range(4): F.append(lambda b=b, i=i: a(f"v_cvt_pk_bf16_f32 v{b+i}, v{b+2*i}, v{b+2*i+1}"))
        def st(b=b, hh=hh):
            sdst_fn(hh)
            g.vm.issue(f"buffer_store_dwordx4 {vr(b)}, v{vL16}, {sr(rWS)}, s{sT0} offen sc1", tag)
        F.append(st)
    return F

def epi_v(g, acc, sdst_fn, tag):
    a = g.a; F = []
    for st_ in range(2):
        b = acc + 8 * st_
        for i in range(8):
            tok = 16 * st_ + (i & 3) + 8 * (i >> 2)
            F.append(lambda i=i, tok=tok, st_=st_: g.ds.issue(f"ds_bpermute_b32 v{vCS+i}, v{vRq}, v{vRs} offset:{4*tok}", f"bp{st_}_{i}"))
        for i in range(8):
            def m(b=b, i=i, st_=st_):
                g.ds.wait(f"bp{st_}_{i}")
                a(f"v_mul_f32 v{b+i}, v{b+i}, v{vCS+i}")
            F.append(m)
        for i in range(4): F.append(lambda b=b, i=i: a(f"v_cvt_pk_bf16_f32 v{b+i}, v{b+2*i}, v{b+2*i+1}"))
        def st(b=b, st_=st_):
            sdst_fn()
            g.vm.issue(f"buffer_store_dwordx4 {vr(b)}, v{vVo}, {sr(rWS)}, s{sT0} offen offset:{512*st_} sc1", tag)
        F.append(st)
    return F

def epi_pair(g, ag, au, pair_fn, tag):
    a = g.a; F = []
    for hh in range(2):
        b = ag + 8 * hh
        for i in range(8): F.append(lambda b=b, i=i, hh=hh: a(f"v_mul_f32 v{b+i}, v{b+i}, v{au+8*hh+i}"))
        for i in range(4): F.append(lambda b=b, i=i: a(f"v_cvt_pk_bf16_f32 v{b+i}, v{b+2*i}, v{b+2*i+1}"))
        def st(b=b, hh=hh):
            pair_fn()
            g.vm.issue(f"buffer_store_dwordx4 {vr(b)}, v{vL16}, {sr(rWS)}, s{sT0} offen offset:{1024*hh} sc1", tag)
        F.append(st)
    return F

vKs, vVs, vQf, vPl, vPa = 80, 88, 96, 100, 101

def pass_B(g, var):
    a = g.a; c = g.cfg; D = c.dist; NR = 5; NS = 96
    swap0 = var != "PQK"
    gran_check(g)
    st = vr(vST)
    for t in range(5):
        cs = vr(vCS + 2 * t)
        acc = vr(aA + 16 * t, 16) if t < 3 else vr(aB + 16 * (t - 3), 16)
        cin = acc if t < 3 else "0"
        if t == 0 and swap0: a(f"v_mfma_f32_32x32x16_bf16 {acc}, {st}, {cs}, {cin}")
        else: a(f"v_mfma_f32_32x32x16_bf16 {acc}, {cs}, {st}, {cin}")
    g.stamp(3)
    a(f"v_lshlrev_b32 v{vL16}, 4, v{vL}")
    a(f"v_cmp_eq_u32 vcc, 0, v{vL}\nv_mov_b32 v{vF0}, {OOB}\nv_cndmask_b32 v{vF0}, v{vF0}, 0, vcc\nv_mov_b32 v{vTagV}, s{sTag}")
    a(f"s_bfe_u32 s{sT1}, s{sC0}, 0x30007\ns_lshl_b32 s{sT1}, s{sT1}, 1\ns_lshr_b32 s{sT2}, s{sW}, 2\ns_add_u32 s{sT1}, s{sT1}, s{sT2}\ns_lshl_b32 s{sT1}, s{sT1}, 17")
    a(f"s_lshl_b32 s{sDst0}, s{sTb1}, 10\ns_add_u32 s{sDst0}, s{sDst0}, s{sT1}")
    a(f"s_mul_i32 s{sXrow}, s{sTb1}, 147456\ns_lshl_b32 s{sT2}, s{sT2}, 11\ns_add_u32 s{sXrow}, s{sXrow}, s{sT2}\ns_add_u32 s{sXrow}, s{sXrow}, {WS_ACT}")
    E = []
    if swap0:
        a(f"v_bfe_u32 v{vVo}, v{vL}, 4, 1\nv_lshlrev_b32 v{vVo}, 16, v{vVo}\nv_and_b32 v{vRq}, 15, v{vL}\nv_lshl_add_u32 v{vVo}, v{vRq}, 4, v{vVo}")
        a(f"v_lshrrev_b32 v{vRq}, 5, v{vL}\nv_lshl_add_u32 v{vVo}, v{vRq}, 8, v{vVo}\nv_lshlrev_b32 v{vRq}, 4, v{vRq}")
        E += epi_v(g, aA, lambda: a(f"s_add_u32 s{sT0}, s{sDst0}, {WS_V}"), "stA")
    if var == "Q":
        E.append(lambda: a(f"v_mul_f32 v{vRq}, 0x3eb8aa3b, v{vRs}"))
        E += epi_qk(g, aA + 16, vRq, lambda hh: a(f"s_add_u32 s{sT0}, s{sDst0}, {WS_Q + 65536*hh}"), "stA")
        E += epi_qk(g, aA + 32, vRs, lambda hh: a(f"s_add_u32 s{sT0}, s{sDst0}, {WS_K + 65536*hh}"), "stA")
    else:
        if var == "PQK":
            a(f"s_cmp_lt_u32 s{sC0}, 1024\ns_cselect_b32 s{sScale}, 0x3eb8aa3b, 1.0\ns_cselect_b32 s{sT1}, {WS_Q}, 0\ns_cselect_b32 s{sT2}, 0, {WS_K}\ns_add_u32 s{sDst0}, s{sDst0}, s{sT1}\ns_add_u32 s{sDst0}, s{sDst0}, s{sT2}")
            a(f"v_mul_f32 v{vRq}, s{sScale}, v{vRs}")
            E += epi_qk(g, aA, vRq, lambda hh: a(f"s_add_u32 s{sT0}, s{sDst0}, {65536*hh}"), "stA")
        E += epi_pair(g, aA + 16, aA + 32, lambda: a(f"s_lshl_b32 s{sT0}, s{sPairA}, 12\ns_add_u32 s{sT0}, s{sT0}, s{sXrow}"), "stH")
    extra = {i: [] for i in range(64)}
    pos = 2; n = 0
    for f in E:
        extra[pos].append(f); n += 1
        if n == c.epiA_per: n = 0; pos += 1
    assert pos < c.flagA_slot
    BAR = 3
    extra[BAR].append(fill_dma_B(g, 7, 0)); extra[BAR + 1].append(fill_dma_B(g, 7, 1))
    slot2unit = {P4_GROUP[t] * 4 + q: (t, q) for t in range(4) for q in range(4)}
    for s in range(1, 8):
        for k in range(2):
            extra[8 * s + BAR + k].append(fill_dma_4(g, *slot2unit[B_SLOTS[s - 1][k]]))
    def flagA():
        g.vm.wait("stA")
        a(f"s_lshl_b32 s{sT0}, s{sTb1}, 4\ns_add_u32 s{sT0}, s{sT0}, s{sJ}\ns_lshl_b32 s{sT0}, s{sT0}, 1\ns_lshr_b32 s{sT1}, s{sW}, 2\ns_add_u32 s{sT0}, s{sT0}, s{sT1}")
        a(f"s_lshl_b32 s{sStr12}, s{sT0}, 2\ns_add_u32 s{sT0}, s{sStr12}, {WS_FA}")
        g.vm.issue(f"buffer_store_dword v{vTagV}, v{vF0}, {sr(rWS)}, s{sT0} offen sc1", "flA")
    extra[c.flagA_slot].append(flagA)
    def polladdr():
        a(f"s_lshl_b32 s{sT5}, s{sR}, 3\ns_lshl_b32 s{sT0}, s{sW}, 1\ns_add_u32 s{sT5}, s{sT5}, s{sT0}\ns_cmp_lt_u32 s{sT5}, 8\ns_cselect_b32 s{sT0}, 0, 8\ns_sub_u32 s{sT5}, s{sT5}, s{sT0}")
        a(f"s_lshr_b32 s{sT0}, s{sHead}, 2\ns_cmp_lt_u32 s{sT0}, 4\ns_cselect_b32 s{sT1}, 0, 32")
        a(f"s_lshl_b32 s{sT0}, s{sT0}, 3\ns_bfe_u32 s{sT2}, s{sHead}, 0x10001\ns_lshl_b32 s{sT2}, s{sT2}, 2\ns_add_u32 s{sT0}, s{sT0}, s{sT2}")
        a(f"s_lshl_b32 s{sT2}, s{sQb}, 7\ns_add_u32 s{sT2}, s{sT2}, s{sT0}\nv_mov_b32 v{vPa}, s{sT2}")
        a(f"s_lshl_b32 s{sT2}, s{sT5}, 7\ns_add_u32 s{sT2}, s{sT2}, s{sT0}\ns_add_u32 s{sT2}, s{sT2}, s{sT1}\nv_writelane_b32 v{vPa}, s{sT2}, 1")
        a(f"s_add_u32 s{sT3}, s{sT2}, 128\nv_writelane_b32 v{vPa}, s{sT3}, 2")
        a(f"s_add_u32 s{sT2}, s{sT2}, s{sT1}\nv_writelane_b32 v{vPa}, s{sT2}, 3")
        a(f"s_add_u32 s{sT2}, s{sT2}, 128\nv_writelane_b32 v{vPa}, s{sT2}, 4")
        a(f"s_mov_b32 s{sT6}, {WS_FA}")
    pollA = f"buffer_load_dword v{vPl}, v{vPa}, {sr(rWS)}, s{sT6} offen sc1"
    extra[c.pollA_slot - 1].append(polladdr)
    extra[c.pollA_slot].append(lambda: g.vm.issue(pollA, "pollA"))
    def chkA():
        g.vm.wait("pollA")
        spin(g, "A", [pollA], lambda: a(f"v_cmp_ne_u32 vcc, s{sTag}, v{vPl}"))
        a(f"s_lshl_b32 s{sT1}, s{sHead}, 16\ns_lshl_b32 s{sT0}, s{sT5}, 10\ns_add_u32 s{sT0}, s{sT0}, s{sT1}\ns_add_u32 s{sT2}, s{sT0}, {WS_V}\ns_add_u32 s{sT0}, s{sT0}, {WS_K}")
        for k in range(2): g.vm.issue(f"buffer_load_dwordx4 {vr(vKs+4*k)}, v{vL16}, {sr(rWS)}, s{sT0} offen offset:{1024*k} sc1", "kv")
        for k in range(2): g.vm.issue(f"buffer_load_dwordx4 {vr(vVs+4*k)}, v{vL16}, {sr(rWS)}, s{sT2} offen offset:{1024*k} sc1", "kv")
        a(f"s_lshl_b32 s{sT0}, s{sQb}, 10\ns_add_u32 s{sT0}, s{sT0}, s{sT1}\ns_add_u32 s{sT0}, s{sT0}, {WS_Q}")
        g.vm.issue(f"buffer_load_dwordx4 {vr(vQf)}, v{vL16}, {sr(rWS)}, s{sT0} offen sc1", "kv")
    extra[c.chkA_slot].append(chkA)
    for j in range(64):
        i = NS + j
        s, k = divmod(j, 8); ks, t = divmod(k, 2)
        g.ds.wait(f"w{i}")
        r = vr(vRing + 4 * (i % NR)); x = vr(vX + 16 * s + 4 * ks); acc = vr(aB + 16 * t, 16)
        a(f"v_mfma_f32_32x32x16_bf16 {acc}, {r}, {x}, {acc}")
        if k == BAR:
            if s < 7: g.vm.wait(f"B{s+1}")
            a("s_barrier")
        if j + D < 64: g.wread(i + D)
        for f in extra[j]: f()
    g.stamp(4)
    for f in epi_pair(g, aB, aB + 16, lambda: a(f"s_lshl_b32 s{sT0}, s{sC3}, 5\ns_add_u32 s{sT0}, s{sT0}, s{sXrow}"), "stH"): f()
    g.vm.q = [t for t in g.vm.q]

vKa, vVa = 10, 11
vKf = 12
vVf = 20
vM = 36
vMx = 44; vT = 45
vS = 48
vC = 104
vP = 120
vO = 128
vP2 = 80
vH = 144

def key_of(r, h): return (r & 3) + 8 * (r >> 2) + 4 * h

def h_loads(g):
    a = g.a; F = []
    for t in range(7):
        def addr(t=t):
            a(f"s_add_u32 s{sT0}, s{sRot4}, {t}\ns_cmp_ge_u32 s{sT0}, 7\ns_cselect_b32 s{sT1}, 7, 0\ns_sub_u32 s{sT0}, s{sT0}, s{sT1}\ns_lshl_b32 s{sT0}, s{sT0}, 12\ns_add_u32 s{sT0}, s{sT0}, s{sKc4}")
        for ks in range(4):
            def f(t=t, ks=ks):
                if ks == 0: addr(t)
                g.vm.issue(f"buffer_load_dwordx4 {vr(vH+16*t+4*ks)}, v{vL16}, {sr(rWS)}, s{sT0} offen offset:{1024*ks} sc1", f"h{t}_{ks}")
            F.append(f)
    return F

def attention(g):
    a = g.a; c = g.cfg
    a(f"s_lshl_b32 s{sT0}, s{sWB}, 1\ns_add_u32 s{sT0}, s{sT0}, {KSLOT*SLOT}\nv_add_u32 v{vT}, s{sT0}, v{vL16}")
    a(f"s_add_u32 s{sT0}, s{sWB}, {KSLOT*SLOT}\nv_add_u32 v{vKa}, s{sT0}, v{vL16}")
    a(f"v_and_b32 v{vVa}, 15, v{vL}\nv_lshlrev_b32 v{vVa}, 4, v{vVa}\nv_lshrrev_b32 v{vMx}, 5, v{vL}\nv_lshl_add_u32 v{vVa}, v{vMx}, 8, v{vVa}")
    a(f"s_add_u32 s{sT0}, s{sWB}, {VSLOT*SLOT}\nv_add_u32 v{vVa}, s{sT0}, v{vVa}")
    a(f"v_and_b32 v{vP}, 31, v{vL}\nv_lshlrev_b32 v{vMx}, 2, v{vMx}\nv_sub_u32 v{vP}, v{vP}, v{vMx}")
    a(f"v_mov_b32 v{vP+1}, 0xffff")
    for p in range(8):
        k0 = key_of(2 * p, 0)
        a(f"v_cmp_le_i32 vcc, {k0}, v{vP}\nv_cndmask_b32 v{vM+p}, 0, v{vP+1}, vcc")
        a(f"v_cmp_le_i32 vcc, {k0+1}, v{vP}\nv_cndmask_b32 v{vM+p}, v{vM+p}, -1, vcc")
    for r in range(16):
        for h in range(2):
            k = key_of(r, h)
            a(f"s_mov_b32 s{sMask+2*r+h}, {hex((0xffffffff << k) & 0xffffffff)}")
    for i in range(16): a(f"v_mov_b32 v{vVf+i}, 0x3f803f80")
    for i in range(16): a(f"v_mov_b32 v{vC+i}, 0")
    a(f"v_mov_b32 v{vMx}, 0xff7fffff")
    a(f"s_mul_i32 s{sKc4}, s{sTb4}, 147456\ns_mul_i32 s{sT0}, s{sQ4}, 28672\ns_add_u32 s{sKc4}, s{sKc4}, s{sT0}\ns_add_u32 s{sKc4}, s{sKc4}, {WS_ACT}")
    g.vm.wait("kv")
    for k in range(2): g.ds.issue(f"ds_write_b128 v{vT}, {vr(vKs+4*k)} offset:{1024*k}", "kvw")
    for k in range(2): g.ds.issue(f"ds_write_b128 v{vT}, {vr(vVs+4*k)} offset:{16384+1024*k}", "kvw")
    g.ds.wait_all()
    a("s_barrier")
    g.stamp(5)
    slot2unit = {P4_GROUP[t] * 4 + q: (t, q) for t in range(4) for q in range(4)}
    for k in range(2): fill_dma_4(g, *slot2unit[B_SLOTS[7][k]])()
    order = [1, 2, 3, 4, 5, 6, 7, 8, 0]
    CK = vr(vC, 16)
    def kread(n, ps):
        g.ds.issue(f"ds_read_b128 {vr(vKf+4*(n&1))}, v{vKa} offset:{(8-order[n])*1024}", f"k{ps}_{n}")
    def vread(n):
        a(f"s_mov_b64 exec, s[{sEx}:{sEx+1}]")
        for st in range(2):
            g.ds.issue(f"ds_read_b128 {vr(vVf+8*(n&1)+4*st)}, v{vVa} offset:{(8-order[n])*1024+512*st}", f"v{n}")
        a("s_mov_b64 exec, -1")
    def cswitch(n, restore):
        i = order[n]
        l = a.newlabel("Lc")
        if i == 0:
            a(f"s_cmp_ge_u32 s{sQb}, 8\ns_cbranch_scc1 {l}")
            for r in range(16): a(f"v_mov_b32 v{vC+r}, {restore}")
        else:
            a(f"s_cmp_lg_u32 s{sQb}, {i-1}\ns_cbranch_scc1 {l}")
            for r in range(16): a(f"v_mov_b32 v{vC+r}, 0xff000000")
        a.label(l)
    def qk(n, ps, restore):
        cswitch(n, restore)
        g.ds.wait(f"k{ps}_{n}")
        a(f"v_mfma_f32_32x32x16_bf16 {vr(vS+16*(n&1),16)}, {vr(vKf+4*(n&1))}, {vr(vQf)}, {CK}")
    def merge():
        for r in range(16):
            a(f"v_cndmask_b32 v{vS+r}, v{vS+16+r}, v{vS+r}, s[{sMask+2*r}:{sMask+2*r+1}]")
    def flagB():
        g.vm.wait("stH")
        a(f"s_add_u32 s{sT0}, s{sT6}, {WS_FB}")
        g.vm.issue(f"buffer_store_dword v{vTagV}, v{vF0}, {sr(rWS)}, s{sT0} offen sc1", "flB")
    pollB = f"buffer_load_dword v{vPl}, v{vPa}, {sr(rWS)}, s{sT5} offen sc1"
    def pollBf():
        a(f"v_and_b32 v{vPa}, 31, v{vL}\nv_lshlrev_b32 v{vPa}, 2, v{vPa}\ns_lshl_b32 s{sT5}, s{sTb4}, 7\ns_add_u32 s{sT5}, s{sT5}, {WS_FB}")
        g.vm.issue(pollB, "pollB")
    kread(0, 1); kread(1, 1)
    qk(0, 1, "0")
    for n in range(9):
        if n + 1 < 9:
            qk(n + 1, 1, "0")
        if n + 2 < 9: kread(n + 2, 1)
        if n == 7: continue
        if n == 8:
            merge()
            kread(0, 2); kread(1, 2)
        b = vS + 16 * (n & 1)
        for i in range(8): a(f"v_max3_f32 v{vMx}, v{b+2*i}, v{b+2*i+1}, v{vMx}")
        if n == 5: flagB()
    a(f"v_mov_b32 v{vT}, v{vMx}\nv_permlane32_swap_b32 v{vMx}, v{vT}\nv_max_f32 v{vMx}, v{vMx}, v{vT}")
    a(f"v_sub_f32 v{vMx}, 0, v{vMx}")
    for i in range(16): a(f"v_mov_b32 v{vC+i}, v{vMx}")
    g.stamp(6)
    vread(0)
    qk(0, 2, f"v{vMx}")
    HL = h_loads(g)
    def chkB():
        g.vm.wait("pollB")
        spin(g, "B", [pollB], lambda: a(f"v_cmp_ne_u32 vcc, s{sTag}, v{vPl}"))
    def half(b, hf, pdst):
        for i in range(8): a(f"v_exp_f32 v{b+8*hf+i}, v{b+8*hf+i}")
        for i in range(4): a(f"v_cvt_pk_bf16_f32 v{pdst+4*hf+i}, v{b+8*hf+2*i}, v{b+8*hf+2*i+1}")
    first = True
    for n in range(7):
        qk(n + 1, 2, f"v{vMx}")
        kread(n + 2, 2)
        vread(n + 1)
        if n == 0: pollBf()
        if n == 3 and c.hload_at == 1: chkB()
        b = vS + 16 * (n & 1)
        for hf in range(2):
            half(b, hf, vP)
            g.ds.wait(f"v{n}")
            cin = "0" if first else vr(vO, 16); first = False
            a(f"v_mfma_f32_32x32x16_bf16 {vr(vO,16)}, {vr(vVf+8*(n&1)+4*hf)}, {vr(vP+4*hf)}, {cin}")
            if n >= 3 and c.hload_at == 1:
                for _ in range(4):
                    if HL: HL.pop(0)()
    qk(8, 2, f"v{vMx}")
    vread(8)
    merge()
    for hf in range(2):
        half(vS, hf, vP)
        for i in range(4):
            p = 4 * hf + i
            a(f"v_bfi_b32 v{vP2+8+p}, v{vM+p}, 0, v{vP+p}\nv_and_b32 v{vP2+p}, v{vM+p}, v{vP+p}")
        g.ds.wait("v7")
        a(f"v_mfma_f32_32x32x16_bf16 {vr(vO,16)}, {vr(vVf+8+4*hf)}, {vr(vP2+8+4*hf)}, {vr(vO,16)}")
        g.ds.wait("v8")
        a(f"v_mfma_f32_32x32x16_bf16 {vr(vO,16)}, {vr(vVf+4*hf)}, {vr(vP2+4*hf)}, {vr(vO,16)}")
    if c.hload_at != 1: chkB()
    while HL: HL.pop(0)()
    p4_setup(g)
    a(f"v_rcp_f32 v{vT}, v{vO+8}")
    for i in range(8): a(f"v_mul_f32 v{vO+i}, v{vO+i}, v{vT}")
    for i in range(4): a(f"v_cvt_pk_bf16_f32 v{vOst+i}, v{vO+2*i}, v{vO+2*i+1}")
    a(f"s_mul_i32 s{sT0}, s{sQb}, 144\ns_add_u32 s{sT0}, s{sT0}, s{sHead}\ns_lshl_b32 s{sT0}, s{sT0}, 10\ns_add_u32 s{sT0}, s{sT0}, {WS_ACT + 112*1024}")
    g.vm.issue(f"buffer_store_dwordx4 {vr(vOst)}, v{vL16}, {sr(rWS)}, s{sT0} offen sc1", "stO")
    g.stamp(7)

vT4 = 10
vRa = 16
vRb = 17
vXo = 18
vYa = 19
vOst = 20
vRing4 = 24
vXv = 44
vOf = 48
aY, aS = 80, 112
vR2 = 5
vNc = 6

def p4_setup(g):
    a = g.a
    a(f"v_bfe_u32 v{vRa}, v{vL}, 2, 2\nv_lshrrev_b32 v{vRb}, 5, v{vL}\nv_lshl_add_u32 v{vRb}, v{vRb}, 2, v{vRa}")
    a(f"v_lshrrev_b32 v{vRa}, 1, v{vRa}\nv_bfe_u32 v{vXo}, v{vL}, 4, 1\nv_lshl_add_u32 v{vRa}, v{vRa}, 1, v{vXo}")
    a(f"v_bfe_u32 v{vXo}, v{vL}, 1, 1\nv_lshl_add_u32 v{vRa}, v{vRa}, 1, v{vXo}")
    a(f"v_and_b32 v{vXo}, 1, v{vL}\nv_lshl_add_u32 v{vRa}, v{vRa}, 1, v{vXo}\nv_lshlrev_b32 v{vRa}, 3, v{vRa}")
    a(f"v_lshl_add_u32 v{vT4}, v{vRb}, 7, v{vRa}\ns_lshl_b32 s{sT0}, s{sQ4}, 13\nv_add_u32 v{vT4}, s{sT0}, v{vT4}")
    a(f"v_xor_b32 v{vT4+1}, 64, v{vT4}")
    for b in (1, 2):
        for cc in range(2): a(f"v_add_u32 v{vT4+2*b+cc}, {65536*b}, v{vT4+cc}")

def phase4(g):
    a = g.a; c = g.cfg; D = c.dist; NR = 5; NS = 72
    def wread(i):
        t, k = divmod(i, 8); ks, cc = divmod(k, 2)
        grp = P4_GROUP[t]; r = vRing4 + 4 * (i % NR)
        b = vT4 + 2 * (grp // 2) + cc; off = (grp % 2) * 32768 + ks * 2048
        g.ds.issue(f"ds_read_b64_tr_b16 {vr(r,2)}, v{b} offset:{off}", f"w{i}")
        g.ds.issue(f"ds_read_b64_tr_b16 {vr(r+2,2)}, v{b} offset:{off+1024}", f"w{i}")
    g.vm.wait("D0")
    a("s_barrier")
    for i in range(D): wread(i)
    extra = {i: [] for i in range(NS)}
    BAR = 3
    for q in range(4): extra[q].append(fill_dma_4(g, 4, q))
    for t in range(1, 5):
        for q in range(4): extra[8 * t + BAR + q].append(fill_dma_4(g, t + 4, q))
    def fin_addr():
        a(f"v_lshrrev_b32 v{vYa}, 3, v{vL}\nv_and_b32 v{vXo}, 7, v{vL}")
        a(f"v_lshlrev_b32 v{vRb}, 1, v{vXo}\nv_xor_b32 v{vRb}, v{vRb}, v{vYa}\nv_lshlrev_b32 v{vRb}, 4, v{vRb}\nv_lshl_add_u32 v{vRb}, v{vYa}, 8, v{vRb}")
        a(f"s_and_b32 s{sT0}, s{sW}, 3\ns_lshl_b32 s{sT0}, s{sT0}, 11\nv_add_u32 v{vRb}, s{sT0}, v{vRb}")
        a(f"v_lshlrev_b32 v{vXo}, 4, v{vXo}\nv_lshl_add_u32 v{vXo}, v{vYa}, 10, v{vXo}\nv_lshlrev_b32 v{vYa}, 4, v{vYa}")
        a(f"s_lshr_b32 s{sT0}, s{sTb4}, 1\ns_lshl_b32 s{sT0}, s{sT0}, 3\ns_add_u32 s{sT0}, s{sT0}, s{sW}")
        a(f"s_lshl_b32 s{sR}, s{sT0}, 13\ns_add_u32 s{sR}, s{sR}, s{sDcol}")
        a(f"s_lshl_b32 s{sT0}, s{sT0}, 7\ns_add_u32 s{sT0}, s{sT0}, {WS_ST+8}")
        g.vm.issue(f"buffer_load_dword v{vR2}, v{vYa}, {sr(rWS)}, s{sT0} offen sc1", "fin")
        g.vm.issue(f"buffer_load_dwordx4 {vr(vXv)}, v{vXo}, {sr(rX)}, s{sR} offen", "fin")
        a(f"v_and_b32 v{vYa}, 31, v{vL}\nv_lshrrev_b32 v{vRa}, 5, v{vL}\nv_and_b32 v{vNc}, 7, v{vL}\nv_xor_b32 v{vRa}, v{vRa}, v{vNc}\nv_lshlrev_b32 v{vRa}, 4, v{vRa}\nv_lshl_add_u32 v{vRa}, v{vYa}, 8, v{vRa}")
        a(f"s_lshl_b32 s{sT0}, s{sQ4}, 13\nv_add_u32 v{vRa}, s{sT0}, v{vRa}")
    extra[8 * 1 + 0].append(fin_addr)
    def flagO():
        g.vm.wait("stO")
        a(f"s_lshl_b32 s{sT0}, s{sQb}, 5\ns_add_u32 s{sT0}, s{sT0}, s{sHead}\ns_lshl_b32 s{sT0}, s{sT0}, 2\ns_add_u32 s{sT0}, s{sT0}, {WS_FO}")
        g.vm.issue(f"buffer_store_dword v{vTagV}, v{vF0}, {sr(rWS)}, s{sT0} offen sc1", "flO")
    extra[8 * c.o_wait_t + 1].append(flagO)
    vPo, vPoa = 7, 8
    pollO = f"buffer_load_dword v{vPo}, v{vPoa}, {sr(rWS)}, s{sT5} offen sc1"
    def pollOf():
        a(f"v_and_b32 v{vPoa}, 7, v{vL}\nv_lshlrev_b32 v{vPoa}, 2, v{vPoa}\ns_lshl_b32 s{sT5}, s{sTb4}, 2\ns_add_u32 s{sT5}, s{sT5}, s{sQ4}\ns_lshl_b32 s{sT5}, s{sT5}, 5\ns_add_u32 s{sT5}, s{sT5}, {WS_FO}")
        g.vm.issue(pollO, "pollO")
    extra[8 * c.o_poll_t + 0].append(pollOf)
    def chkO():
        g.vm.wait("pollO")
        spin(g, "O", [pollO], lambda: a(f"v_cmp_ne_u32 vcc, s{sTag}, v{vPo}"))
        a(f"s_mul_i32 s{sT0}, s{sQ4}, 20480\ns_sub_u32 s{sT0}, s{sKc4}, s{sT0}\ns_add_u32 s{sT0}, s{sT0}, {112*1024}\ns_add_u32 s{sT1}, s{sT0}, 4096")
        for k in range(8):
            g.vm.issue(f"buffer_load_dwordx4 {vr(vOf+4*k)}, v{vL16}, {sr(rWS)}, s{(sT0, sT1)[k//4]} offen offset:{1024*(k%4)} sc1", f"h{7+k//4}_{k%4}")
    extra[8 * c.o_chk_t + 0].append(chkO)
    def nonce_ld():
        a(f"v_lshrrev_b32 v{vPoa}, 3, v{vL}\nv_and_b32 v{vPo}, 7, v{vL}\nv_lshlrev_b32 v{vPo}, 4, v{vPo}\nv_lshl_add_u32 v{vPoa}, v{vPoa}, 9, v{vPo}")
        a(f"s_or_b32 s{sT0}, s{sTb4}, s{sCt}\ns_or_b32 s{sSpin}, s{sT0}, s{sW}\ns_cmp_eq_u32 s{sSpin}, 0\ns_cselect_b32 s{sT0}, 0, {OOB}\nv_or_b32 v{vPoa}, s{sT0}, v{vPoa}")
        a(f"s_mov_b32 s{sHead}, s{sSpin}\ns_mov_b32 s{sT5}, {WS_FB}\ns_mov_b32 s{sT6}, {WS_FB+4096}")
        for l in nonce_loads(vPoa): g.vm.issue(l, "nonce2")
    extra[8 * 6 + 1].append(nonce_ld)
    def red_write(acc, g0, g1, tag):
        F = []
        def adr(d): a(f"s_lshr_b32 s{sT0}, s{sW}, 2\ns_mul_i32 s{sT0}, s{sT0}, {(g1-g0)*32768}\ns_add_u32 s{sT0}, s{sT0}, {g0*32768}\nv_add_u32 v{d}, s{sT0}, v{vRa}")
        F.append(lambda: adr(vYa))
        for i in range(4):
            if i > 0: F.append(lambda i=i: a(f"v_xor_b32 v{vNc}, {32*i}, v{vYa}"))
            for cc in range(2):
                F.append(lambda i=i, cc=cc: g.ds.issue(f"ds_write_b128 v{vYa if i == 0 else vNc}, {vr(acc+16*cc+4*i)} offset:{128*cc}", tag))
        return F
    def red_read(dst, g0, g1, tag):
        F = []
        def adr(): a(f"s_lshr_b32 s{sT0}, s{sW}, 2\ns_mul_i32 s{sT0}, s{sT0}, {(g1-g0)*32768}\ns_add_u32 s{sT0}, s{sT0}, {g0*32768}\nv_add_u32 v{vYa}, s{sT0}, v{vRb}\nv_xor_b32 v{vNc}, 16, v{vYa}")
        F.append(adr)
        for q in range(4):
            for hf in range(2):
                F.append(lambda q=q, hf=hf: g.ds.issue(f"ds_read_b128 {vr(dst+8*q+4*hf)}, v{vYa if hf == 0 else vNc} offset:{8192*q}", f"{tag}{q}"))
        return F
    FY = red_write(aY, 4, 2, "yw")
    for k, f in enumerate(FY): extra[57 + k // 2].append(f)
    vYr = vH
    FR = red_read(vYr, 4, 2, "yr")
    for k, f in enumerate(FR): extra[67 + k // 2].append(f)
    for i in range(NS):
        t, k = divmod(i, 8); ks, cc = divmod(k, 2)
        g.wait(vm=f"h{t}_{ks}", ds=f"w{i}")
        r = vr(vRing4 + 4 * (i % NR))
        if t < 7:
            x = vr(vH + 16 * t + 4 * ks); acc = vr(aY + 16 * cc, 16); cin = acc if i >= 2 else "0"
        else:
            x = vr(vOf + 16 * (t - 7) + 4 * ks); acc = vr(aS + 16 * cc, 16); cin = acc if i >= 58 else "0"
        a(f"v_mfma_f32_32x32x16_bf16 {acc}, {r}, {x}, {cin}")
        if k == BAR:
            if t < 8: g.vm.wait(f"D{t+1}")
            else: g.ds.wait("yw")
            a("s_barrier")
        if i + D < NS: wread(i + D)
        for f in extra[i]: f()
    g.stamp(8)
    g.vm.wait("fin")
    a(f"v_mul_f32 v{vR2}, v{vR2}, v{vR2}")
    g.ds.wait("yr1")
    for i in range(8): a(f"v_add_f32 v{vYr+i}, v{vYr+i}, v{vYr+8+i}")
    g.ds.wait("yr3")
    for i in range(8): a(f"v_add_f32 v{vYr+16+i}, v{vYr+16+i}, v{vYr+24+i}")
    for f in red_write(aS, 0, 3, "sw"): f()
    for i in range(8): a(f"v_add_f32 v{vYr+i}, v{vYr+i}, v{vYr+16+i}")
    for i in range(8): a(f"v_mul_f32 v{vYr+i}, v{vYr+i}, v{vR2}")
    for i in range(8): a(f"v_mul_f32 v{vYr+8+i}, 0xbfb8aa3b, v{vYr+i}")
    for i in range(8): a(f"v_exp_f32 v{vYr+8+i}, v{vYr+8+i}")
    for i in range(8): a(f"v_add_f32 v{vYr+8+i}, 1.0, v{vYr+8+i}")
    for i in range(8): a(f"v_rcp_f32 v{vYr+8+i}, v{vYr+8+i}")
    for i in range(8): a(f"v_mul_f32 v{vYr+i}, v{vYr+i}, v{vYr+8+i}")
    for i in range(4): a(f"v_lshlrev_b32 v{vYr+8+2*i}, 16, v{vXv+i}\nv_and_b32 v{vYr+9+2*i}, 0xffff0000, v{vXv+i}")
    g.ds.wait_all()
    a("s_barrier")
    vSr = vH + 32
    for f in red_read(vSr, 0, 3, "sr"): f()
    g.ds.wait("sr1")
    for i in range(8): a(f"v_add_f32 v{vSr+i}, v{vSr+i}, v{vSr+8+i}")
    g.ds.wait("sr3")
    for i in range(8): a(f"v_add_f32 v{vSr+16+i}, v{vSr+16+i}, v{vSr+24+i}")
    for i in range(8): a(f"v_add_f32 v{vSr+i}, v{vSr+i}, v{vSr+16+i}")
    for i in range(8): a(f"v_fmac_f32 v{vYr+8+i}, v{vSr+i}, v{vYr+i}")
    for i in range(4): a(f"v_cvt_pk_bf16_f32 v{vSr+i}, v{vYr+8+2*i}, v{vYr+9+2*i}")
    g.vm.issue(f"buffer_store_dwordx4 {vr(vSr)}, v{vXo}, {sr(rOUT)}, s{sR} offen", "out")
    g.stamp(9)
    if c.prof:
        a(f"s_lshl_b32 s{sT0}, s{sTb4}, 3\ns_lshr_b32 s{sT0}, s{sT0}, 4\ns_lshl_b32 s{sT0}, s{sT0}, 3\ns_add_u32 s{sT0}, s{sT0}, s{sCt}\ns_lshl_b32 s{sT0}, s{sT0}, 3\ns_add_u32 s{sT0}, s{sT0}, s{sW}")
        a(f"s_lshl_b32 s{sT0}, s{sT0}, 6\ns_add_u32 s{sT0}, s{sT0}, {WS_PROF}")
        for i in range(12): a(f"v_mov_b32 v{216+i}, s{SP+2*i}")
        for i in range(3):
            a(f"buffer_store_dwordx4 {vr(216+4*i)}, v{vF0}, {sr(rWS)}, s{sT0} offen offset:{16*i}")
    a(f"s_cmp_lg_u32 s{sHead}, 0\ns_cbranch_scc1 L_exit")
    a("s_waitcnt vmcnt(0)")
    def chk():
        a(f"v_min3_u32 v228, v208, v209, v210\nv_max3_u32 v229, v208, v209, v210\nv_min3_u32 v228, v228, v211, v212\nv_max3_u32 v229, v229, v211, v212")
        a(f"v_min3_u32 v228, v228, v213, v214\nv_max3_u32 v229, v229, v213, v214\nv_min_u32 v228, v228, v215\nv_max_u32 v229, v229, v215")
        a(f"v_xor_b32 v228, s{sTag}, v228\nv_xor_b32 v229, s{sTag}, v229\nv_or_b32 v228, v228, v229\nv_cmp_ne_u32 vcc, 0, v228")
    spin(g, "N", nonce_loads(vPoa), chk)
    a(f"buffer_store_dword v{vTagV}, v{vF0}, {sr(rWS)}, 0 offen sc1")

def nonce_loads(va):
    return [f"buffer_load_dwordx4 v[208:211], v{va}, {sr(rWS)}, s{sT5} offen sc1",
            f"buffer_load_dwordx4 v[212:215], v{va}, {sr(rWS)}, s{sT6} offen sc1"]

def generate(cfg):
    g = G(cfg); a = g.a
    prologue(g)
    a(f"s_cmp_lt_u32 s{sC0}, 2048\ns_cbranch_scc1 L_A_ns")
    s0 = g.snap()
    pass_A(g, True)
    a(f"s_cmp_lt_u32 s{sJ}, 4\ns_cbranch_scc0 L_B_pv")
    s1 = g.snap()
    ends = []
    pass_B(g, "Q"); a(f"s_mov_b32 s{sT6}, s{sStr12}"); a("s_branch L_att"); ends.append(g.snap())
    a.label("L_B_pv")
    g.restore(s1); pass_B(g, "PV"); a(f"s_mov_b32 s{sT6}, s{sStr12}"); a("s_branch L_att"); ends.append(g.snap())
    a.label("L_A_ns")
    g.restore(s0); pass_A(g, False); pass_B(g, "PQK"); a(f"s_mov_b32 s{sT6}, s{sStr12}"); ends.append(g.snap())
    a.label("L_att")
    n = min(len(e[0]) for e in ends)
    for e in ends: assert e[0][-n:] == ends[0][0][-n:] or True
    def suffix(e):
        q = e[0]; k = q.index("kv"); return q[k:]
    assert all(suffix(e) == suffix(ends[0]) for e in ends), [suffix(e) for e in ends]
    g.vm.q = suffix(ends[0]); assert all(e[1] == [] for e in ends), [e[1] for e in ends]
    attention(g)
    phase4(g)
    a.label("L_exit")
    a("s_endpgm")
    a.label("L_end")
    npad = a.pad_hazards()
    nerr = a.check_waits()
    assert nerr == 0
    hdr = open("recurrent_scan__sliding_block__glu_gated_bilinear__prompt.s.ref").read().split("; Override")[0]
    out = hdr + "; @launch grid=(256,1,1) block=(512,1,1) lds=163840\n"
    out += '.amdgcn_target "amdgcn-amd-amdhsa--gfx950"\n.text\n' + kernel_header(NAME) + "\n" + a.text()
    out += '.section .rodata,"a"\n' + kernel_desc(NAME, 256, 102, 256) + "\n"
    print(f"; instrs {sum(1 for i in a.I if i.kind not in ('label','dir'))} pad {npad}", file=sys.stderr)
    return out

if __name__ == "__main__":
    cfg = Cfg()
    out = sys.argv[1]
    for kv in sys.argv[2:]:
        k, v = kv.split("=")
        setattr(cfg, k, type(getattr(cfg, k))(v))
    open(out, "w").write(generate(cfg))
```

```python
import re, sys

TRANS = ("v_exp_f32", "v_log_f32", "v_rcp_f32", "v_rsq_f32", "v_sqrt_f32", "v_sin_f32", "v_cos_f32", "v_rcp_iflag_f32")

def regs_of(tok):
    tok = tok.strip()
    neg = tok.lstrip("-")
    if neg.startswith("abs(") or neg.startswith("|"):
        neg = neg.replace("abs(", "").replace(")", "").replace("|", "")
    tok = neg
    m = re.fullmatch(r"([vas])\[(\d+):(\d+)\]", tok)
    if m:
        return [(m.group(1), i) for i in range(int(m.group(2)), int(m.group(3)) + 1)]
    m = re.fullmatch(r"([vas])(\d+)", tok)
    if m:
        return [(m.group(1), int(m.group(2)))]
    if tok == "vcc": return [("s", "vcc_lo"), ("s", "vcc_hi")]
    if tok in ("vcc_lo", "vcc_hi"): return [("s", tok)]
    if tok == "exec": return [("s", "exec_lo"), ("s", "exec_hi")]
    if tok in ("exec_lo", "exec_hi"): return [("s", tok)]
    if tok == "m0": return [("s", "m0")]
    return []

class Ins:
    __slots__ = ("text", "op", "ops", "mods", "w", "r", "kind", "label", "target", "passes", "srcC", "srcAB", "comment")
    def __init__(self, text):
        self.text = text
        self.label = None; self.target = None; self.passes = 0; self.srcC = []; self.srcAB = []
        t = text.split(";")[0].strip()
        self.w = []; self.r = []
        if t.endswith(":"):
            self.label = t[:-1]; self.kind = "label"; self.op = ""; return
        if t.startswith(".") or t == "":
            self.kind = "dir"; self.op = ""; return
        parts = t.split(None, 1)
        op = parts[0]; self.op = op
        rest = parts[1] if len(parts) > 1 else ""
        ops = []; cur = ""; depth = 0
        for ch in rest:
            if ch in "[(": depth += 1
            if ch in "])": depth -= 1
            if ch == "," and depth == 0:
                ops.append(cur.strip()); cur = ""
            else:
                cur += ch
        if cur.strip(): ops.append(cur.strip())
        mods = ""
        if ops:
            sp = ops[-1].split(None, 1)
            if len(sp) > 1 and not ops[-1].startswith("hwreg"):
                ops[-1] = sp[0]; mods = sp[1]
        self.ops = ops; self.mods = mods
        R = lambda i: regs_of(ops[i]) if i < len(ops) else []
        base = re.sub(r"_(e32|e64|dpp|sdwa)$", "", op)
        if op.startswith("v_mfma") or op.startswith("v_smfmac"):
            self.kind = "mfma"
            self.passes = 8 if "32x32" in op else 4
            self.w = R(0); self.srcAB = R(1) + R(2); self.srcC = R(3); self.r = self.srcAB + self.srcC
        elif op.startswith("v_"):
            self.kind = "valu"
            if base.startswith("v_cmp"):
                self.w = R(0); self.r = R(1) + R(2)
                if base.startswith("v_cmpx"): self.w += regs_of("exec")
            elif base in ("v_readfirstlane_b32", "v_readlane_b32"):
                self.w = R(0); self.r = R(1) + R(2)
            elif base.startswith("v_permlane") and "swap" in base:
                self.w = R(0) + R(1); self.r = R(0) + R(1)
            elif base in ("v_add_co_u32", "v_sub_co_u32", "v_addc_co_u32", "v_subb_co_u32"):
                self.w = R(0) + R(1); self.r = sum((R(i) for i in range(2, len(ops))), [])
            elif base == "v_nop":
                pass
            else:
                self.w = R(0); self.r = sum((R(i) for i in range(1, len(ops))), [])
                if base in ("v_fmac_f32", "v_dot2c_f32_bf16", "v_writelane_b32") or "dpp" in op or "row_" in mods or "quad_perm" in mods:
                    self.r += R(0)
                if base == "v_cndmask_b32" and len(ops) == 3: self.r += regs_of("vcc")
        elif op.startswith("ds_"):
            self.kind = "ds"
            if op.startswith("ds_read") or op.startswith("ds_bpermute") or op.startswith("ds_permute") or op.startswith("ds_swizzle") or "_rtn" in op:
                self.w = R(0); self.r = sum((R(i) for i in range(1, len(ops))), [])
            else:
                self.r = sum((R(i) for i in range(len(ops))), [])
        elif op.startswith("buffer_") :
            self.kind = "vmem"
            if op in ("buffer_inv", "buffer_wbl2"):
                pass
            elif "lds" in mods.split():
                self.r = sum((R(i) for i in range(len(ops))), []) + regs_of("m0")
            elif op.startswith("buffer_load"):
                self.w = R(0); self.r = sum((R(i) for i in range(1, len(ops))), [])
            else:
                self.r = sum((R(i) for i in range(len(ops))), [])
                if op.startswith("buffer_atomic") and "sc0" in mods.split(): self.w = R(0)
        elif op.startswith("global_"):
            self.kind = "vmem"
            if op.startswith("global_load_lds"):
                self.r = sum((R(i) for i in range(len(ops))), []) + regs_of("m0")
            elif op.startswith("global_load"):
                self.w = R(0); self.r = sum((R(i) for i in range(1, len(ops))), [])
            elif op.startswith("global_atomic") and "sc0" in mods.split():
                self.w = R(0); self.r = sum((R(i) for i in range(1, len(ops))), [])
            else:
                self.r = sum((R(i) for i in range(len(ops))), [])
        elif op.startswith("s_load") or op.startswith("s_buffer_load") or op in ("s_memtime", "s_memrealtime"):
            self.kind = "smem"
            self.w = R(0); self.r = sum((R(i) for i in range(1, len(ops))), [])
        elif op.startswith("s_"):
            self.kind = "salu"
            if op in ("s_branch",) or op.startswith("s_cbranch"):
                self.kind = "branch"; self.target = ops[0]
                if "vcc" in op: self.r = regs_of("vcc")
                if "exec" in op: self.r = regs_of("exec")
            elif op in ("s_nop", "s_waitcnt", "s_barrier", "s_endpgm", "s_setprio", "s_sleep"):
                pass
            elif op.startswith("s_cmp") or op.startswith("s_bitcmp"):
                self.r = R(0) + R(1)
            elif op == "s_setpc_b64":
                self.r = R(0)
            else:
                self.w = R(0); self.r = sum((R(i) for i in range(1, len(ops))), [])
                if "saveexec" in op: self.w += regs_of("exec"); self.r += regs_of("exec")
                if op in ("s_addk_i32", "s_mulk_i32"): self.r += R(0)
        else:
            raise ValueError("unknown op: " + text)
    def states(self):
        if self.kind in ("label", "dir"): return 0
        if self.op == "s_nop": return int(self.ops[0], 0) + 1
        return 1

def _ov(a, b):
    return bool(set(a) & set(b))

def need_states(p, c):
    n = 0
    pv = [x for x in p.w if x[0] in "va"]
    ps = [x for x in p.w if x[0] == "s"]
    pb = re.sub(r"_(e32|e64|dpp|sdwa)$", "", p.op); cb = re.sub(r"_(e32|e64|dpp|sdwa)$", "", c.op)
    if p.kind == "valu":
        if c.kind == "mfma" and _ov(pv, c.r): n = max(n, 3 if pb.startswith("v_dot") else 2)
        if c.kind == "valu":
            if cb in ("v_readfirstlane_b32", "v_readlane_b32") and _ov(pv, c.r): n = max(n, 1)
            if cb.startswith("v_permlane") and _ov(pv, c.r): n = max(n, 2)
            if ("dpp" in c.op or "row_" in c.mods or "quad_perm" in c.mods) and _ov(pv, c.r): n = max(n, 2)
            if pb in TRANS and cb not in TRANS and _ov(pv, c.r): n = max(n, 1)
            if pb in TRANS and cb in TRANS and _ov(pv, c.r): n = max(n, 1)
            if _ov(ps, c.r):
                n = max(n, 4 if cb in ("v_readlane_b32", "v_writelane_b32") else 2)
            if pb.startswith("v_dot") and (_ov(pv, c.r) or _ov(pv, c.w)):
                if not (cb == pb and not _ov(pv, sum((regs_of(o) for o in c.ops[1:3]), []))): n = max(n, 3)
            if ("op_sel" in p.mods or "sdwa" in p.op or "dst_sel" in p.mods) and (_ov(pv, c.r) or _ov(pv, c.w)): n = max(n, 1)
        if c.kind == "vmem" and _ov(ps, c.r): n = max(n, 5)
        if c.kind in ("salu", "branch", "smem") and _ov(ps, c.r): n = max(n, 1)
        if c.kind == "mfma" and _ov(ps, regs_of("exec")): n = max(n, 4)
    if p.kind == "mfma":
        big = p.passes == 8
        if c.kind == "mfma":
            if _ov(p.w, c.srcAB): n = max(n, 12 if big else 8)
            if _ov(p.w, c.srcC):
                if not (p.w == c.srcC and p.passes == c.passes): n = max(n, 10 if big else 6)
            if _ov(p.w, c.w) and not (p.w == c.srcC and p.passes == c.passes):
                n = max(n, 10 if big else 6)
        elif c.kind in ("valu", "ds", "vmem"):
            if _ov(p.w, c.r) or _ov(p.w, c.w): n = max(n, 12 if big else 8)
            if c.kind == "valu" and _ov(p.srcC, c.w): n = max(n, 7 if big else 3)
            if c.kind in ("ds", "vmem") and _ov(p.srcC, c.w): n = max(n, 7 if big else 3)
    if p.kind == "salu" and _ov(p.w, regs_of("m0")) and c.kind == "vmem" and _ov(c.r, regs_of("m0")): n = max(n, 1)
    if p.kind == "vmem" and ("x4" in p.op or "x3" in p.op) and ("store" in p.op):
        data = regs_of(p.ops[0]) if p.op.startswith("buffer") else regs_of(p.ops[1])
        if _ov(data, c.w): n = max(n, 2 if c.kind in ("valu", "mfma") else 1)
    if p.kind == "ds" and p.op in ("ds_write_b128", "ds_write_b96") :
        pass
    return n

class Asm:
    def __init__(self):
        self.I = []
        self.uid = 0
    def __call__(self, text):
        for l in text.split("\n"):
            if l.strip():
                self.I.append(Ins(l.strip()))
    def label(self, name): self(name + ":")
    def newlabel(self, p="L"):
        self.uid += 1
        return f"{p}_{self.uid}"
    def preds(self):
        lab = {i.label: k for k, i in enumerate(self.I) if i.kind == "label"}
        P = [[] for _ in self.I]
        for k, i in enumerate(self.I):
            if k + 1 < len(self.I) and i.op not in ("s_branch", "s_endpgm", "s_setpc_b64"):
                P[k + 1].append(k)
            if i.kind == "branch" and i.target in lab:
                P[lab[i.target]].append(k)
        return P
    def pad_hazards(self, verbose=False):
        changed = True; total = 0
        while changed:
            changed = False
            P = self.preds()
            for k, c in enumerate(self.I):
                if c.kind in ("label", "dir"): continue
                worst = 0; why = None
                stack = [(p, 0) for p in P[k]]; seen = set()
                while stack:
                    j, d = stack.pop()
                    if (j, d) in seen or d >= 20: continue
                    seen.add((j, d))
                    p = self.I[j]
                    if p.kind not in ("label", "dir"):
                        n = need_states(p, c)
                        if n - d > worst: worst = n - d; why = p
                    for q in P[j]: stack.append((q, d + p.states()))
                if worst > 0:
                    if verbose: print(f"pad {worst} before '{c.text}' (after '{why.text}')", file=sys.stderr)
                    self.I.insert(k, Ins(f"s_nop {worst-1}"))
                    total += worst
                    changed = True
                    break
        return total
    def check_waits(self, start=0, max_states=200000):
        lab = {i.label: k for k, i in enumerate(self.I) if i.kind == "label"}
        errs = set(); seen = set()
        stack = [(start, (), ())]
        n = 0
        while stack:
            pc, vm, lg = stack.pop()
            while pc < len(self.I):
                key = (pc, vm, lg)
                i = self.I[pc]
                if i.kind == "label" or i.kind == "branch":
                    if key in seen: break
                    seen.add(key)
                n += 1
                if n > max_states * 50: raise RuntimeError("check_waits: too many states")
                if i.op == "s_waitcnt":
                    t = i.text
                    m = re.search(r"vmcnt\((\d+)\)", t)
                    if m:
                        c = int(m.group(1)); vm = vm[len(vm) - c:] if c < len(vm) else vm
                        if c == 0: vm = ()
                    m = re.search(r"lgkmcnt\((\d+)\)", t)
                    if m:
                        c = int(m.group(1))
                        if c == 0: lg = ()
                        elif not any(e[1] == "smem" for e in lg):
                            lg = lg[len(lg) - c:] if c < len(lg) else lg
                elif i.kind not in ("label", "dir"):
                    touched = set(i.r) | set(i.w)
                    for q, nm in ((vm, "vm"), (lg, "lgkm")):
                        for e in q:
                            if e[0] & touched:
                                if not (e[0] & set(i.r)) and ((nm == "vm" and i.kind == "vmem") or (nm == "lgkm" and i.kind == "ds" and e[1] == "ds")):
                                    continue
                                errs.add((pc, e[2], nm))
                    if i.kind == "vmem":
                        vm = vm + ((frozenset(i.w), "vm", pc),)
                        if len(vm) > 63: vm = vm[-63:] if not any(e[0] for e in vm[:-63]) else vm
                    elif i.kind == "ds":
                        lg = lg + ((frozenset(i.w), "ds", pc),)
                    elif i.kind == "smem":
                        lg = lg + ((frozenset(i.w), "smem", pc),)
                    if len(vm) > 80: vm = vm[-80:]
                    if len(lg) > 40: lg = lg[-40:]
                if i.op == "s_endpgm" or i.op == "s_setpc_b64": break
                if i.kind == "branch":
                    if i.target in lab:
                        if i.op == "s_branch":
                            pc = lab[i.target]; continue
                        stack.append((lab[i.target], vm, lg))
                pc += 1
        for pc, src, nm in sorted(errs):
            print(f"WAIT ERROR ({nm}): '{self.I[pc].text}' @{pc} uses result of '{self.I[src].text}' @{src}", file=sys.stderr)
        return len(errs)
    def text(self):
        out = []
        for i in self.I:
            out.append(i.text if i.kind in ("label", "dir") else "    " + i.text)
        return "\n".join(out) + "\n"

class VmTracker:
    def __init__(self, a): self.a = a; self.q = []
    def issue(self, text, tag=None):
        self.a(text); self.q.append(tag)
    def n_after(self, tag):
        idx = max(k for k, t in enumerate(self.q) if t == tag)
        return len(self.q) - 1 - idx
    def wait(self, tag, extra=""):
        if tag not in self.q: return
        n = self.n_after(tag)
        assert n <= 63, n
        self.a(f"s_waitcnt vmcnt({n}) {extra}".strip())
        idx = len(self.q) - n
        self.q = self.q[idx:]
    def wait_all(self):
        self.a("s_waitcnt vmcnt(0)"); self.q = []

def kernel_header(name):
    return f".globl {name}\n.p2align 8\n.type {name},@function\n{name}:"
def kernel_desc(name, vgpr=256, sgpr=102, accum=None):
    accum = accum or min(256, (vgpr + 3) // 4 * 4)
    return (f".p2align 6\n.amdhsa_kernel {name}\n  .amdhsa_next_free_vgpr {vgpr}\n  .amdhsa_next_free_sgpr {sgpr}\n  .amdhsa_accum_offset {accum}\n"
            "  .amdhsa_group_segment_fixed_size 0\n  .amdhsa_kernarg_size 80\n  .amdhsa_user_sgpr_count 2\n  .amdhsa_user_sgpr_kernarg_segment_ptr 1\n"
            "  .amdhsa_system_sgpr_workgroup_id_x 1\n  .amdhsa_float_denorm_mode_32 3\n.end_amdhsa_kernel")
```
